```python
import torch

def _softmax(x, axis=-1):
    return torch.softmax(x, dim=axis)
def _gelu(x):
    return torch.nn.functional.gelu(x, approximate="tanh")
def _silu(x):
    return torch.nn.functional.silu(x)
def _sigmoid(x):
    return torch.sigmoid(x)
def _layernorm(x, axis=-1, eps=1e-5):
    m = x.mean(dim=axis, keepdim=True)
    v = x.var(dim=axis, keepdim=True, unbiased=False)
    return (x - m) / torch.sqrt(v + eps)
def _scatter_add(tgt, idx, src, axis=0):
    return tgt.clone().index_add_(axis, idx, src)
def _segment_sum(src, seg, n):
    out = torch.zeros((n,) + src.shape[1:], dtype=src.dtype)
    return out.index_add_(0, seg, src)
def _pad(x, pw):
    flat = tuple(v for pair in reversed(pw) for v in pair)
    return torch.nn.functional.pad(x, flat)

kernel_name = 'gated_mix__ssm_conv_s5__ssm_conv_s4__prompt'

def setup_inputs():

    _w = (lambda a: (lambda t: t.to(torch.bfloat16) if t.is_floating_point() else t)(torch.as_tensor(a)))
    def _A_setup():
        B, S, D = 1, 2048, 512
        P = D
        Lambda_re = -0.5 * (lambda _x: torch.exp(torch.as_tensor(_x)))((lambda *s: torch.randn(*s, dtype=torch.bfloat16) * 0.2)(P))
        Lambda_im = (lambda *s: torch.randn(*s, dtype=torch.bfloat16) * 0.4)(P) * 1.0
        B_re = (lambda *s: torch.randn(*s, dtype=torch.bfloat16) * 0.2)(P, D) * (D ** -0.5)
        B_im = (lambda *s: torch.randn(*s, dtype=torch.bfloat16) * 0.2)(P, D) * (D ** -0.5)
        C_re = (lambda *s: torch.randn(*s, dtype=torch.bfloat16) * 0.2)(D, P) * (P ** -0.5)
        C_im = (lambda *s: torch.randn(*s, dtype=torch.bfloat16) * 0.2)(D, P) * (P ** -0.5)
        log_dt = (lambda *s: torch.randn(*s, dtype=torch.bfloat16) * 0.2)(P) * 0.3 - 2.0
        Dskip = (lambda *s: torch.randn(*s, dtype=torch.bfloat16) * 0.05)(D)
        return {
            "x": _w((lambda *s: torch.randn(*s, dtype=torch.bfloat16) * 0.05)(B, S, D)),
            "Lambda_re": _w(Lambda_re),
            "Lambda_im": _w(Lambda_im),
            "B_re": _w(B_re),
            "B_im": _w(B_im),
            "C_re": _w(C_re),
            "C_im": _w(C_im),
            "log_dt": _w(log_dt),
            "Dskip": _w(Dskip),
        }
    _A_in = _A_setup()

    def _B_setup():
        B, L, D, N = 1, 2048, 512, 128
        A_re = -(lambda _x: torch.exp(torch.as_tensor(_x)))((lambda *s: torch.randn(*s, dtype=torch.bfloat16) * 3.2)(D, N))
        A_im = torch.pi * (lambda *s: torch.randn(*s, dtype=torch.bfloat16) * 0.05)(D, N)
        B_re = (lambda *s: torch.randn(*s, dtype=torch.bfloat16) * 0.1)(D, N)
        B_im = (lambda *s: torch.randn(*s, dtype=torch.bfloat16) * 0.1)(D, N)
        C_re = (lambda *s: torch.randn(*s, dtype=torch.bfloat16) * 0.1)(D, N)
        C_im = (lambda *s: torch.randn(*s, dtype=torch.bfloat16) * 0.1)(D, N)
        log_dt = (lambda *s: torch.randn(*s, dtype=torch.bfloat16) * 0.05)(D) * 0.5 - 4.0
        Dskip = (lambda *s: torch.randn(*s, dtype=torch.bfloat16) * 0.05)(D)
        return {
            "u": _w((lambda *s: torch.randn(*s, dtype=torch.bfloat16) * 0.05)(B, L, D)),
            "A_re": _w(A_re),
            "A_im": _w(A_im),
            "B_re": _w(B_re),
            "B_im": _w(B_im),
            "C_re": _w(C_re),
            "C_im": _w(C_im),
            "log_dt": _w(log_dt),
            "Dskip": _w(Dskip),
        }
    _B_in = _B_setup()

    return {
        "A_x": _A_in["x"],
        "A_Lambda_re": _A_in["Lambda_re"],
        "A_Lambda_im": _A_in["Lambda_im"],
        "A_B_re": _A_in["B_re"],
        "A_B_im": _A_in["B_im"],
        "A_C_re": _A_in["C_re"],
        "A_C_im": _A_in["C_im"],
        "A_log_dt": _A_in["log_dt"],
        "A_Dskip": _A_in["Dskip"],
        "B_u": _B_in["u"],
        "B_A_re": _B_in["A_re"],
        "B_A_im": _B_in["A_im"],
        "B_B_re": _B_in["B_re"],
        "B_B_im": _B_in["B_im"],
        "B_C_re": _B_in["C_re"],
        "B_C_im": _B_in["C_im"],
        "B_log_dt": _B_in["log_dt"],
        "B_Dskip": _B_in["Dskip"],
        "gate_w": _w((lambda *s: torch.randn(*s, dtype=torch.bfloat16) * 0.05)(512) * 16.0),
    }

def reference(A_x, A_Lambda_re, A_Lambda_im, A_B_re, A_B_im, A_C_re, A_C_im, A_log_dt, A_Dskip, B_u, B_A_re, B_A_im, B_B_re, B_B_im, B_C_re, B_C_im, B_log_dt, B_Dskip, gate_w):
    def _A_ref(x, Lambda_re, Lambda_im, B_re, B_im, C_re, C_im, log_dt, Dskip):
        Bsz, L, H = x.shape
        Lam = Lambda_re + 1j * Lambda_im
        Bmat = B_re + 1j * B_im
        Cmat = C_re + 1j * C_im
        dt = torch.exp(log_dt)
        Lam_bar = torch.exp(dt * Lam)
        B_bar = ((Lam_bar - 1.0) / Lam)[:, None] * Bmat
        Bu = torch.einsum("bld,pd->blp", x + 0j, B_bar)
        h = torch.zeros_like(Bu[:, 0, :])
        hs = []
        for t in range(L):
            h = Lam_bar[None, :] * h + Bu[:, t, :]
            hs.append(h)
        hseq = torch.stack(hs, 1)
        y = 2.0 * torch.einsum("blp,dp->bld", hseq, Cmat).real + x * Dskip[None, None, :]
        return y

    def _B_ref(u, A_re, A_im, B_re, B_im, C_re, C_im, log_dt, Dskip):
        Bsz, L, D = u.shape
        dt = torch.exp(log_dt)[:, None]
        A = A_re + 1j * A_im
        Bc = B_re + 1j * B_im
        Cc = C_re + 1j * C_im
        logdA = dt * A
        dB = dt * Bc
        l = (lambda x, dt: x.to(dt))(torch.arange(L), A_re.dtype)
        P = torch.exp(logdA[:, :, None] * l[None, None, :])
        K = torch.einsum("dn,dnl,dn->dl", Cc, P, dB).real
        L2 = 2 * L
        Kp = _pad(K, ((0, 0), (0, L)))
        up = (lambda x, *d: x.permute(*d))(u, 0, 2, 1)
        up = _pad(up, ((0, 0), (0, 0), (0, L)))
        Kf = (lambda x, axes=(-2,-1): torch.fft.rfft2(x.float(), dim=axes))(Kp[:, None, :], axes=(-2, -1))
        Uf = (lambda x, axes=(-2,-1): torch.fft.rfft2(x.float(), dim=axes))(up[:, :, None, :], axes=(-2, -1))
        Yf = Uf * Kf[None, :, :, :]
        y = (lambda x, s, axes=(-2,-1): torch.fft.irfft2(x, s=s, dim=axes).to(torch.bfloat16))(Yf, (1, L2), axes=(-2, -1))[:, :, 0, :L]
        y = (lambda x, *d: x.permute(*d))(y, 0, 2, 1) + u * Dskip[None, None, :]
        return y

    x = A_x
    g = _sigmoid((x * gate_w).sum(-1, keepdims=True))
    a = _A_ref(x, A_Lambda_re, A_Lambda_im, A_B_re, A_B_im, A_C_re, A_C_im, A_log_dt, A_Dskip)
    b = _B_ref(x, B_A_re, B_A_im, B_B_re, B_B_im, B_C_re, B_C_im, B_log_dt, B_Dskip)
    return g * a + (1 - g) * b
```

```python
import re

TRANS = ("v_exp_f32", "v_log_f32", "v_rcp_f32", "v_rsq_f32", "v_sqrt_f32", "v_sin_f32", "v_cos_f32")

def regs_of(tok):
    tok = tok.strip()
    tok = tok.lstrip('-')
    if tok.startswith('|') and tok.endswith('|'):
        tok = tok[1:-1]
    m = re.fullmatch(r'([vsa])(\d+)', tok)
    if m:
        return {(m.group(1), int(m.group(2)))}
    m = re.fullmatch(r'([vsa])\[(\d+):(\d+)\]', tok)
    if m:
        return {(m.group(1), i) for i in range(int(m.group(2)), int(m.group(3)) + 1)}
    if tok in ('vcc', 'vcc_lo', 'vcc_hi'):
        return {('s', 'vcc')}
    if tok in ('exec', 'exec_lo', 'exec_hi'):
        return {('s', 'exec')}
    if tok == 'm0':
        return {('s', 'm0')}
    return set()

def split_ops(s):
    out, depth, cur = [], 0, ''
    for ch in s:
        if ch == '[': depth += 1
        if ch == ']': depth -= 1
        if ch == ',' and depth == 0:
            out.append(cur.strip()); cur = ''
        else:
            cur += ch
    if cur.strip():
        out.append(cur.strip())
    return out

class Ins:
    def __init__(self, text):
        self.text = text
        t = text.split(';')[0].strip()
        self.label = None
        self.op = None
        if t.endswith(':'):
            self.label = t[:-1]
            return
        if not t or t.startswith('.'):
            return
        parts = t.split(None, 1)
        self.op = parts[0]
        rest = parts[1] if len(parts) > 1 else ''
        ops = split_ops(rest)
        mods = ''
        if ops:
            l = ops[-1].split(None, 1)
            ops[-1] = l[0]
            if len(l) > 1: mods = l[1]
        self.ops = ops
        self.mods = mods
        op = self.op
        self.is_mfma = op.startswith('v_mfma')
        self.is_valu = op.startswith('v_') and not self.is_mfma
        self.is_dot = op.startswith('v_dot')
        self.is_trans = any(op.startswith(x) for x in TRANS)
        self.is_ds = op.startswith('ds_')
        self.is_vmem = op.startswith('buffer_') or op.startswith('global_')
        self.is_salu = op.startswith('s_')
        self.is_dpp = ('_dpp' in op) or ('row_' in mods) or ('quad_perm' in mods) or ('wave_' in mods)
        self.is_sdwa = ('_sdwa' in op) or ('op_sel' in mods and not op.startswith('v_pk') )
        self.is_perml = op.startswith('v_permlane')
        self.is_rdlane = op.startswith('v_readlane') or op.startswith('v_readfirstlane')
        R = [regs_of(o) for o in ops]
        self.w = set(); self.r = set()
        self.srcc = set(); self.ab = set()
        if self.is_mfma:
            self.w = R[0]; self.ab = R[1] | R[2]; self.srcc = R[3]; self.r = self.ab | self.srcc
            self.passes = 8 if '32x32' in op else 4
        elif self.is_valu:
            if op.startswith('v_cmpx'):
                self.w = {('s', 'exec')} | (R[0] if len(R) == 3 else set())
                self.r = set().union(*R[-2:])
            elif self.is_perml and 'swap' in op:
                self.w = R[0] | R[1]; self.r = R[0] | R[1]
            elif op.startswith(('v_add_co', 'v_sub_co', 'v_subrev_co', 'v_addc_co', 'v_subb_co')):
                self.w = R[0] | R[1]; self.r = set().union(*R[2:])
            else:
                self.w = R[0]; self.r = set().union(*R[1:]) if len(R) > 1 else set()
                if op.startswith(('v_fmac', 'v_mac', 'v_dot2c', 'v_writelane')) or self.is_dpp or '_sdwa' in op:
                    self.r |= R[0]
                if op.startswith('v_cndmask') and len(R) == 3:
                    self.r |= {('s', 'vcc')}
        elif self.is_ds:
            if op.startswith(('ds_read', 'ds_bpermute', 'ds_permute', 'ds_swizzle')):
                self.w = R[0]; self.r = set().union(*R[1:]) if len(R) > 1 else set()
            else:
                self.r = set().union(*R) if R else set()
            if 'addtid' in op: self.r |= {('s', 'm0')}
        elif self.is_vmem:
            lds = re.search(r'\blds\b', mods) is not None
            if 'load' in op and not lds:
                self.w = R[0]; self.r = set().union(*R[1:])
            else:
                self.r = set().union(*R)
            if lds: self.r |= {('s', 'm0')}
            self.lds = lds
            self.wide_store = ('store' in op) and ('x3' in op or 'x4' in op)
            self.sdata = R[0] if 'store' in op else set()
        elif self.is_salu:
            if op.startswith(('s_cmp', 's_cbranch', 's_branch', 's_waitcnt', 's_barrier', 's_nop', 's_endpgm', 's_setprio', 's_sleep', 's_bitcmp')):
                self.r = set().union(*R) if R else set()
            else:
                self.w = R[0] if R else set()
                self.r = set().union(*R[1:]) if len(R) > 1 else set()
                if 'saveexec' in op: self.w |= {('s', 'exec')}
    def states(self):
        if self.op is None: return 0
        if self.op == 's_nop': return int(self.ops[0], 0) + 1
        return 1

def isv(x): return x[0] in ('v', 'a')
def need(p, c):
    n = 0
    if p.op is None or c.op is None: return 0
    pwv = {x for x in p.w if isv(x)}
    pws = {x for x in p.w if not isv(x)}
    if p.is_valu:
        if c.is_mfma and (pwv & c.r): n = max(n, 3 if p.is_dot else 2)
        if p.is_trans and c.is_valu and not c.is_trans and (pwv & c.r): n = max(n, 1)
        if p.is_trans and (c.is_ds or c.is_vmem) and (pwv & c.r): n = max(n, 1)
        if p.is_sdwa and c.is_valu and (pwv & (c.r | c.w)): n = max(n, 1)
        if p.is_dot and (c.is_valu or c.is_ds or c.is_vmem) and (pwv & (c.r | c.w)):
            same = (c.op == p.op)
            if same and (pwv & c.w) and not (pwv & set().union(*[regs_of(o) for o in c.ops[1:3]])): pass
            else: n = max(n, 3)
        if c.is_valu and c.is_dpp and (pwv & c.r): n = max(n, 2)
        if c.is_perml and (pwv & c.r): n = max(n, 2)
        if c.is_rdlane and (pwv & c.r): n = max(n, 1)
        if c.is_valu and (pws & c.r): n = max(n, 4 if (c.is_rdlane or c.op.startswith('v_writelane')) else 2)
        if c.is_vmem and (pws & c.r): n = max(n, 5)
        if ('s', 'exec') in pws:
            if c.is_valu and c.is_dpp: n = max(n, 5)
            if c.is_mfma or c.is_perml or c.is_rdlane: n = max(n, 4)
    if p.is_mfma:
        big = 12 if p.passes == 8 else 8
        if c.is_mfma:
            if p.w & c.ab: n = max(n, big)
            if p.w & c.srcc:
                if not (p.w == c.srcc and p.passes == c.passes): n = max(n, 10 if p.passes == 8 else 6)
            elif p.w & c.w: n = max(n, big)
        elif c.is_valu or c.is_ds or c.is_vmem:
            if p.w & (c.r | c.w): n = max(n, big)
            if c.is_valu and (p.srcc & c.w): n = max(n, 7 if p.passes == 8 else 3)
    if p.is_salu and ('s', 'm0') in p.w and ('s', 'm0') in c.r and (c.is_ds or c.is_vmem): n = max(n, 1)
    if p.is_vmem and getattr(p, 'wide_store', False):
        if (p.sdata & c.w): n = max(n, 2 if c.is_valu else 1)
    if p.is_ds and p.op.startswith(('ds_write_b128', 'ds_write_b96', 'ds_write2_b64')):
        if c.is_valu and (p.r & c.w): n = max(n, 2)
    return n

WIN = 14
def fix_hazards(lines):
    ins = [Ins(l) for l in lines]
    labels = {}
    out = []
    def hist_need(hist, c, extra=0):
        d = extra; k = 0
        for p in reversed(hist):
            if p.op is None: continue
            k = max(k, need(p, c) - d)
            d += p.states()
            if d > WIN: break
        return k
    n_ins = 0
    for c in ins:
        if c.op is not None:
            k = hist_need(out, c)
            if k > 0:
                out.append(Ins('    s_nop %d' % (k - 1))); n_ins += 1
        out.append(c)
    changed = True
    while changed:
        changed = False
        pos = {c.label: i for i, c in enumerate(out) if c.label}
        for i, c in enumerate(out):
            if c.op and (c.op.startswith('s_cbranch') or c.op == 's_branch'):
                tgt = pos.get(c.ops[0])
                if tgt is None: continue
                hist = out[:i + 1]
                d = 0; k = 0
                for t in out[tgt:tgt + 40]:
                    if t.op is None: continue
                    k = max(k, hist_need(hist, t, d))
                    d += t.states()
                    if d > WIN: break
                if k > 0:
                    out.insert(i, Ins('    s_nop %d' % (k - 1))); n_ins += 1
                    changed = True
                    break
    return [c.text for c in out], n_ins

class Asm:
    def __init__(self):
        self.l = []
        self.uid = 0
    def __call__(self, s):
        for ln in s.split('\n'):
            ln = ln.strip()
            if not ln: continue
            if ln.endswith(':') and ' ' not in ln: self.l.append(ln)
            else: self.l.append('    ' + ln)
    def c(self, s): self.l.append('    ; ' + s)
    def label(self, base):
        self.uid += 1
        return 'L_%s_%d' % (base, self.uid)

def v(n, k=1): return 'v%d' % n if k == 1 else 'v[%d:%d]' % (n, n + k - 1)
def s(n, k=1): return 's%d' % n if k == 1 else 's[%d:%d]' % (n, n + k - 1)
def a(n, k=1): return 'a%d' % n if k == 1 else 'a[%d:%d]' % (n, n + k - 1)
import struct
def f2u(x): return '0x%08x' % struct.unpack('<I', struct.pack('<f', x))[0]
```

```python
from asmlib import *
from g1 import *

FT = 0
FTS = 2064
XT = 117760
XTS = 4608
KT = XT + 4 * XTS
KCP = 2496
KTS = 2 * KCP
CV_LDS = KT + 4 * KTS + 128
CRED = 0

class Stream:
    def __init__(self, A, look=10):
        self.A = A; self.reads = []; self.ops = []; self.look = look
    def read(self, texts, after=None):
        self.reads.append((texts, after)); return len(self.reads) - 1
    def op(self, text, needs=()):
        self.ops.append((text, tuple(needs))); return len(self.ops) - 1
    def emit(self):
        A = self.A
        nxt = 0
        issued = []
        cnt = 0
        done = 0
        for j, (text, needs) in enumerate(self.ops):
            mx = max(needs) if needs else -1
            budget = 2 if nxt > mx else 99
            while nxt < len(self.reads):
                texts, after = self.reads[nxt]
                if nxt > mx:
                    if budget <= 0: break
                    if after is not None and after >= j: break
                    if cnt + len(texts) - done > self.look: break
                else:
                    assert after is None or after < j, (j, nxt, after)
                    if cnt + len(texts) - done > 15:
                        k = cnt + len(texts) - 15
                        A('s_waitcnt lgkmcnt(%d)' % (cnt - k)); done = k
                for t in texts: A(t)
                cnt += len(texts); issued.append(cnt); nxt += 1
                budget -= len(texts)
            if needs:
                k = max(issued[n] for n in needs)
                if k > done:
                    A('s_waitcnt lgkmcnt(%d)' % (cnt - k)); done = k
            A(text)
        assert nxt == len(self.reads)

def gen_cv(A, opts):
    ST = opts.get('st', '')
    vm = VM()
    A('v_and_b32 v1, 63, v0')
    A('v_lshrrev_b32 v2, 6, v0')
    A('v_readfirstlane_b32 s5, v2')
    A('s_lshl_b32 s3, s3, 6')
    A('s_and_b32 s4, s4, 15')
    A('s_lshl_b32 s4, s4, 2')
    A('s_add_u32 s3, s3, s4')
    A('s_lshl_b32 s60, s3, 1')
    A('v_lshlrev_b32 v2, 12, v0')
    A('v_add_u32 v2, s60, v2')
    A('s_and_b32 s6, s5, 3')
    A('s_lshr_b32 s7, s5, 2')
    A('s_add_u32 s4, s3, s6')
    A('s_lshl_b32 s60, s4, 8')
    A('s_lshl_b32 s61, s7, 7')
    A('s_add_u32 s60, s60, s61')
    A('v_lshl_add_u32 v3, v1, 1, s60')
    A('s_lshl_b32 s61, s4, 1')
    A('v_mov_b32 v4, s61')
    A('s_waitcnt lgkmcnt(0)')
    for i, n in enumerate(('BAre', 'BAim', 'BBre', 'BBim', 'BCre', 'BCim')):
        A('global_load_ushort v%d, v3, s[%d:%d]' % (8 + i, P[n], P[n] + 1))
    A('global_load_ushort v14, v4, s[%d:%d]' % (P['Bldt'], P['Bldt'] + 1))
    A('global_load_ushort v15, v4, s[%d:%d]' % (P['BDs'], P['BDs'] + 1))
    vm.issue('par', 8)
    XG = 240
    for r in range(4):
        A('global_load_dwordx2 v[%d:%d], v2, s[%d:%d] offset:%d%s' % (XG + 2 * r, XG + 2 * r + 1, P['x'], P['x'] + 1, 1024 * r, opts.get('xl', '')))
    vm.issue('x', 4)
    srd(A, 56, P['ws'], WS_END)
    A('s_mul_i32 s62, s6, %d' % KTS)
    A('s_add_u32 s62, s62, %d' % KT)
    A('s_mul_i32 s63, s7, %d' % KCP)
    A('s_add_u32 s63, s63, s62')
    A('s_mul_i32 s64, s6, %d' % XTS)
    A('s_add_u32 s64, s64, %d' % XT)
    for r in range(4): A('v_mov_b32 v%d, 0' % (16 + r))
    A('v_lshl_add_u32 v5, v1, 4, s63')
    A('ds_write_b128 v5, v[16:19]')
    A('ds_write_b128 v5, v[16:19] offset:1024')
    A('v_lshl_add_u32 v5, v1, 3, s63')
    A('ds_write_b64 v5, v[16:17] offset:2048')
    A('v_lshl_add_u32 v5, v1, 3, s64')
    A('ds_write_b64 v5, v[16:17]')
    A('v_and_b32 v6, 15, v1')
    A('v_lshrrev_b32 v7, 4, v1')
    A('v_mul_u32_u24 v5, 49, v7')
    A('v_add3_u32 v5, v5, v6, s7')
    A('v_lshl_add_u32 v5, v5, 1, s63')
    A('v_lshl_add_u32 v16, v7, 1, 2')
    A('v_mov_b32 v17, 0x3f80')
    A('v_cmp_le_u32 vcc, v6, v16')
    A('s_and_saveexec_b64 s[70:71], vcc')
    A('ds_write_b16 v5, v17 offset:%d' % (2 * (1024 + 26)))
    A('s_mov_b64 exec, s[70:71]')
    A('s_lshl_b32 s65, s6, 9')
    A('s_lshl_b32 s66, s7, 8')
    A('s_add_u32 s65, s65, s66')
    A('s_add_u32 s66, s65, %d' % (31 * FTS))
    A('s_mov_b32 m0, s65')
    vm.wait(A, 'par')
    for r in range(8, 16): A('v_lshlrev_b32 v%d, 16, v%d' % (r, r))
    A('v_mul_f32 v14, %s, v14' % f2u(LOG2E))
    A('v_exp_f32 v14, v14')
    A('v_cvt_pk_bf16_f32 v14, v14, v14')
    A('v_lshlrev_b32 v14, 16, v14')
    for r in (8, 9, 10, 11): A('v_mul_f32 v%d, v14, v%d' % (r, r))
    A('v_mul_f32 v8, %s, v8' % f2u(LOG2E))
    A('v_mul_f32 v9, %s, v9' % f2u(INV2PI))
    def cm(d, a_, b_):
        return ['v_mul_f32 v%d, v%d, v%d' % (d, a_, b_), 'v_mul_f32 v%d, v%d, v%d' % (d + 1, a_, b_ + 1),
                'v_fma_f32 v%d, -v%d, v%d, v%d' % (d, a_ + 1, b_ + 1, d), 'v_fmac_f32 v%d, v%d, v%d' % (d + 1, a_ + 1, b_)]
    pk = [0]
    hi_m0 = [False]
    def put(row, z, neg=False):
        t = 20 + (pk[0] & 3); pk[0] += 1
        off = row * FTS - (31 * FTS if hi_m0[0] else 0)
        assert 0 <= off < 65536
        return ['v_cvt_pk_bf16_f32 v%d, v%d, %sv%d' % (t, z, '-' if neg else '', z + 1),
                'ds_write_addtid_b32 v%d offset:%d' % (t, off)]
    def inter(*seqs):
        n = max(len(q) for q in seqs)
        for i in range(n):
            for q in seqs:
                if i < len(q): A(q[i])
    F = lambda b: 32 + 2 * b
    cexp(A, F(1), F(1) + 1, 8, 9, 1.0, 16, 17)
    cexp(A, F(16), F(16) + 1, 8, 9, 16.0, 18, 19)
    O = lambda k: 66 + 2 * k
    cexp(A, O(1), O(1) + 1, 8, 9, 256.0, 16, 17)
    G0, G1 = 24, 26
    inter(cm(G0, 12, 10), cm(F(2), F(1), F(1)))
    A('v_mov_b32 v28, 0x3f80')
    A('ds_write_addtid_b32 v28 offset:%d' % (16 * FTS))
    for t in put(17, F(1)) + put(0, G0, True): A(t)
    g, gn = G0, G1
    for i in range(1, 16):
        seqs = [cm(gn, g, F(16)) + put(i, gn, True)]
        b = i + 2
        if b <= 15: seqs.append(cm(F(b), F(b - 2), F(2)))
        if i + 1 <= 15: seqs.append(put(16 + i + 1, F(i + 1)))
        if 2 <= i <= 7: seqs.append(cm(O(i), O(i - 1), O(1)))
        inter(*seqs)
        g, gn = gn, g
    A('s_mov_b32 m0, s66'); hi_m0[0] = True
    for t in put(32, O(1)): A(t)
    lst = [(32 + m, O(1), F(2 * m)) for m in range(1, 9)]
    lst += [(41 + n, O(2 + (n >> 2)), F(4 * ((n & 3) + 1))) for n in range(8)]
    lst += [(49 + n, O(4 + (n >> 1)), F(8 * ((n & 1) + 1))) for n in range(8)]
    for i in range(0, len(lst), 2):
        (r0, a0, b0), (r1, a1, b1) = lst[i], lst[i + 1]
        inter(cm(24, a0, b0) + put(r0, 24), cm(26, a1, b1) + put(r1, 26))
    A('s_mov_b32 s67, 0x05040100')
    A('s_mov_b32 s68, 0x07060302')
    A('v_lshlrev_b32 v5, 3, v0')
    A('v_add_u32 v5, %d, v5' % (XT + 512))
    vm.wait(A, 'x')
    for c in range(4):
        sel = 's67' if (c & 1) == 0 else 's68'
        h = c >> 1
        A('v_perm_b32 v%d, v%d, v%d, %s' % (24 + 2 * c, XG + 2 + h, XG + h, sel))
        A('v_perm_b32 v%d, v%d, v%d, %s' % (25 + 2 * c, XG + 6 + h, XG + 4 + h, sel))
        A('ds_write_b64 v5, v[%d:%d] offset:%d' % (24 + 2 * c, 25 + 2 * c, c * XTS))
    aG, aX, a80, a81, a82, a4, aW, aT = 8, 9, 10, 11, 12, 13, 14, 16
    A('v_mul_u32_u24 v%d, %d, v6' % (aG, FTS))
    A('v_and_b32 v2, 1, v7')
    A('v_lshlrev_b32 v2, 8, v2')
    A('v_lshrrev_b32 v3, 1, v7')
    A('v_lshl_add_u32 v2, v3, 7, v2')
    A('s_lshl_b32 s65, s6, 9')
    A('v_add_u32 v2, s65, v2')
    A('v_add_u32 v%d, v%d, v2' % (aG, aG))
    A('v_lshlrev_b32 v%d, 5, v6' % aX)
    A('v_lshl_add_u32 v%d, v7, 4, v%d' % (aX, aX))
    A('v_add_u32 v%d, s64, v%d' % (aX, aX))
    A('v_and_b32 v3, 1, v6')
    A('v_xor_b32 v3, 1, v3')
    A('v_mul_u32_u24 v3, %d, v3' % (KCP + 2))
    A('v_sub_u32 v4, 15, v6')
    A('v_lshl_add_u32 v3, v4, 1, v3')
    A('v_add_u32 v3, s62, v3')
    A('v_lshl_add_u32 v%d, v7, 4, v3' % a80)
    A('v_add_u32 v%d, 1024, v%d' % (a81, a80))
    A('v_add_u32 v%d, 2048, v%d' % (a82, a80))
    A('v_lshl_add_u32 v%d, v7, 3, v3' % a4)
    A('v_add_u32 v%d, 1216, v%d' % (a4, a4))
    lB, lJ = A.label('cvB'), A.label('cvJ')
    AC = 32
    def rd128(dst, ad, off): return ['ds_read_b128 v[%d:%d], v%d offset:%d' % (dst, dst + 3, ad, off)]
    def rd8(dst, dw):
        ad = a80 + dw // 256; o = dw % 256
        assert o + 3 <= 255
        return ['ds_read2_b32 v[%d:%d], v%d offset0:%d offset1:%d' % (dst, dst + 1, ad, o, o + 1),
                'ds_read2_b32 v[%d:%d], v%d offset0:%d offset1:%d' % (dst + 2, dst + 3, ad, o + 2, o + 3)]
    def rd4(dst, dw0, dw1):
        return ['ds_read2_b32 v[%d:%d], v%d offset0:%d offset1:%d' % (dst, dst + 1, a4, dw0 - 304, dw0 - 303),
                'ds_read2_b32 v[%d:%d], v%d offset0:%d offset1:%d' % (dst + 2, dst + 3, a4, dw1 - 304, dw1 - 303)]
    def mf(d, a_, b_, c_):
        return 'v_mfma_f32_16x16x32_bf16 v[%d:%d], v[%d:%d], v[%d:%d], %s' % (d, d + 3, a_, a_ + 3, b_, b_ + 3, '0' if c_ is None else v(c_, 4))
    def tabwrite(D, off):
        A('v_cvt_pk_bf16_f32 v18, v%d, v%d' % (D + 3, D + 2))
        A('v_cvt_pk_bf16_f32 v19, v%d, v%d' % (D + 1, D))
        A('v_alignbit_b32 v20, v19, v18, 16')
        A('ds_write_b64 v%d, v[18:19] offset:%d' % (aW, off))
        A('ds_write_b16 v%d, v18 offset:%d' % (aW, off + KCP + 2))
        A('ds_write_b32 v%d, v20 offset:%d' % (aW, off + KCP + 4))
        A('ds_write_b16_d16_hi v%d, v19 offset:%d' % (aW, off + KCP + 8))
    def dense(S, sigmas, touched, XR, KR, last):
        for n, sg in enumerate(sigmas):
            bank = last['n'] & 1; last['n'] += 1
            xb, kb = XR + 32 * bank, KR + 12 * bank
            prev = last.get(bank)
            Bs = [0, 1, 2] if sg == 0 else [0, 1]
            kid = {}; xid = {}
            aft = lambda r: (prev or {}).get(r)
            kid[0] = S.read(rd8(kb, 256 - 16 * sg), aft(kb))
            xid[0] = S.read(rd128(xb, aX, 480 - 64 * sg), aft(xb))
            for B in Bs[1:]:
                kid[B] = S.read(rd8(kb + 4 * B, 256 - 16 * (sg + 8 * B)), aft(kb + 4 * B))
            for tp in range(1, 8):
                xid[tp] = S.read(rd128(xb + 4 * tp, aX, 480 + 512 * tp - 64 * sg), aft(xb + 4 * tp))
            use = {}
            for tp in range(8):
                for B in Bs:
                    T = tp + B
                    if T > 7: continue
                    j = S.op(mf(AC + 4 * T, kb + 4 * B, xb + 4 * tp, AC + 4 * T if T in touched else None), (kid[B], xid[tp]))
                    touched.add(T); use[kb + 4 * B] = j; use[xb + 4 * tp] = j
            if prev:
                for r, j in prev.items(): use.setdefault(r, j)
            last[bank] = use
    A('s_cmp_lg_u32 s7, 0')
    A('s_cbranch_scc1 ' + lB)
    A('v_bfe_u32 v3, v6, 1, 1')
    A('v_add_u32 v3, v3, v6')
    A('v_lshrrev_b32 v3, 1, v3')
    A('v_mul_u32_u24 v3, %d, v3' % FTS)
    A('v_add_u32 v3, %d, v3' % (32 * FTS))
    A('v_add_u32 v%d, v3, v2' % aT)
    A('v_lshlrev_b32 v3, 5, v6')
    A('v_lshl_add_u32 v3, v7, 3, v3')
    A('s_add_u32 s65, s62, 560')
    A('v_sub_u32 v%d, s65, v3' % aW)
    A('v_cmp_eq_u32 vcc, 0, v1')
    A('v_cndmask_b32 v24, 0, v15, vcc')
    for r in (25, 26, 27): A('v_mov_b32 v%d, 0' % r)
    A('s_waitcnt lgkmcnt(0)')
    A('s_barrier')
    S = Stream(A, 14)
    for s_ in range(8):
        f = 64 + 12 * s_
        g_ = S.read(rd128(f, aG, 16 * s_)); f0 = S.read(rd128(f + 4, aG, 16 * FTS + 16 * s_)); f1 = S.read(rd128(f + 8, aT, 16 * s_))
        S.op(mf(24, f + 4, f, 24), (g_, f0))
        S.op(mf(28, f + 8, f, 28 if s_ else None), (g_, f1))
    S.emit()
    tabwrite(24, 8 + 512)
    tabwrite(28, 8)
    A('v_cvt_pk_bf16_f32 v18, 0, v31')
    A('v_cvt_pk_bf16_f32 v19, v31, v31')
    A('s_mov_b32 exec_lo, 0')
    A('s_mov_b32 exec_hi, 0x80000000')
    A('ds_write_b64 v%d, v[18:19]' % aW)
    A('ds_write_b32 v%d, v19 offset:%d' % (aW, KCP + 4))
    A('ds_write_b16 v%d, v19 offset:%d' % (aW, KCP + 8))
    A('s_mov_b64 exec, -1')
    A('s_waitcnt lgkmcnt(0)')
    touched = set(); last = {'n': 0}
    S = Stream(A, 12)
    dense(S, [0, 1, 2, 3], touched, 64, 128, last)
    S.op('s_barrier')
    dense(S, [4, 5], touched, 64, 128, last)
    S.emit()
    A('s_lshl_b32 s65, s5, 12')
    A('v_lshl_add_u32 v2, v1, 4, s65')
    for t in range(4): A('ds_write_b128 v2, v[%d:%d] offset:%d' % (AC + 16 + 4 * t, AC + 16 + 4 * t + 3, CRED + 1024 * t))
    A('s_branch ' + lJ)
    A(lB + ':')
    A('v_add_u32 v%d, %d, v%d' % (aT, 41 * FTS, aG))
    A('v_and_b32 v2, 3, v6')
    A('v_lshlrev_b32 v2, 6, v2')
    A('v_lshrrev_b32 v3, 2, v6')
    A('v_lshlrev_b32 v3, 4, v3')
    A('v_sub_u32 v2, v2, v3')
    A('v_add_u32 v2, 652, v2')
    A('v_and_b32 v3, 1, v6')
    A('v_mul_u32_u24 v3, 80, v3')
    A('v_lshrrev_b32 v4, 1, v6')
    A('v_lshlrev_b32 v4, 4, v4')
    A('v_sub_u32 v3, v3, v4')
    A('v_add_u32 v3, %d, v3' % (924 + 64))
    A('v_cmp_gt_u32 vcc, 8, v6')
    A('v_cndmask_b32 v2, v3, v2, vcc')
    A('v_lshlrev_b32 v3, 2, v7')
    A('v_sub_u32 v2, v2, v3')
    A('v_lshl_add_u32 v%d, v2, 1, s62' % aW)
    A('v_mov_b32 v17, s62')
    A('s_waitcnt lgkmcnt(0)')
    A('s_barrier')
    WR, TB8, TB16, SPF, XZ, ZD, ZA = 64, 80, 104, 120, 124, 140, 188
    S = Stream(A, 14)
    for s_ in range(8):
        f = 140 + 8 * s_
        g_ = S.read(rd128(f, aG, 16 * s_)); f0 = S.read(rd128(f + 4, aT, 16 * s_))
        S.op(mf(24, f, f + 4, 24 if s_ else None), (g_, f0))
    S.emit()
    for w, tw in enumerate((0, 54, 104, 154)):
        for t in rd8(WR + 4 * w, 512 + tw // 2): A(t)
    tabwrite(24, 0)
    A('v_cvt_pk_bf16_f32 v19, v27, v27')
    A('s_mov_b32 exec_lo, 0')
    A('s_mov_b32 exec_hi, 0x00800000')
    A('ds_write_b16 v17, v19 offset:%d' % (2 * 587))
    A('ds_write_b16 v17, v19 offset:%d' % (2 * 588))
    A('ds_write_b32 v17, v19 offset:%d' % (KCP + 2 * 588))
    A('s_mov_b64 exec, -1')
    A('s_waitcnt lgkmcnt(0)')
    touched = set()
    S = Stream(A, 12)
    xuse = {}
    xid = {}
    def xreads(b):
        xb = XZ + 8 * (b & 1)
        xid[b] = (S.read(rd128(xb, aX, 480 + 512 * b), xuse.get(b - 2)), S.read(rd128(xb + 4, aX, 464 + 512 * b), xuse.get(b - 2)))
    def zops(b):
        xb = XZ + 8 * (b & 1); zd = ZD + 24 * (b & 1)
        cl = [(0, 0), (1, 0), (0, 1), (1, 1)] + ([(2, 0), (3, 1)] if b < 4 else [])
        for i, (w, h) in enumerate(cl):
            xuse[b] = S.op(mf(zd + 4 * i, xb + 4 * h, WR + 4 * w, None), (xid[b][h],))
        if b < 4:
            T = b + 4
            xuse[b] = S.op(mf(AC + 4 * T, SPF, xb, AC + 4 * T if T in touched else None), (spid, xid[b][0])); touched.add(T)
    def cvts(b):
        zd = ZD + 24 * (b & 1); za = ZA + 12 * (b & 1)
        n = 6 if b < 4 else 4
        return ['v_cvt_pk_bf16_f32 v%d, v%d, v%d' % (za + k, zd + 2 * k, zd + 2 * k + 1) for k in range(2 * n)]
    def cls(b):
        za = ZA + 12 * (b & 1)
        o = []
        for B in (2, 3, 4):
            for a_ in range(2):
                if b + B <= 7: o.append((b + B, za + 4 * a_, TB8 + 4 * (2 * (B - 2) + a_), t8[(B, a_)]))
        for B in (4, 5, 6, 7):
            if b + B <= 7: o.append((b + B, za + 8, TB16 + 4 * (B - 4), t16[B]))
        return o
    xreads(0)
    spid = S.read(rd8(SPF, 280))
    xreads(1)
    t8 = {}; t16 = {}
    for B in (2, 3, 4):
        for a_ in range(2):
            t8[(B, a_)] = S.read(rd4(TB8 + 4 * (2 * (B - 2) + a_), 304 + 32 * (2 * a_) + 32 - 8 * B, 304 + 32 * (2 * a_ + 1) + 32 - 8 * B))
    for B in (4, 5, 6, 7):
        t16[B] = S.read(rd4(TB16 + 4 * (B - 4), 432 + 56 - 8 * B, 432 + 40 + 56 - 8 * B))
    zops(0)
    zops(1)
    for t in cvts(0): S.op(t)
    for b in range(6):
        if b + 2 < 6: xreads(b + 2)
        cv = cvts(b + 1) if b + 1 < 6 else []
        o = cls(b)
        per = -(-len(cv) // len(o))
        for (T, a_, b_, rid) in o:
            S.op(mf(AC + 4 * T, a_, b_, AC + 4 * T if T in touched else None), (rid,)); touched.add(T)
            for _ in range(per):
                if cv: S.op(cv.pop(0))
        if b + 2 < 6: zops(b + 2)
    S.emit()
    A('s_barrier')
    S = Stream(A, 12)
    dense(S, [6, 7], touched, 64, 128, {'n': 0})
    S.emit()
    A('s_lshl_b32 s65, s5, 12')
    A('v_lshl_add_u32 v2, v1, 4, s65')
    for t in range(4): A('ds_write_b128 v2, v[%d:%d] offset:%d' % (AC + 4 * t, AC + 4 * t + 3, CRED + 1024 * t))
    for r in range(16): A('v_mov_b32 v%d, v%d' % (AC + r, AC + 16 + r))
    A(lJ + ':')
    A('v_xor_b32 v2, 0x4000, v2')
    A('v_lshlrev_b32 v3, 5, v6')
    A('v_lshl_add_u32 v3, v7, 3, v3')
    A('s_lshl_b32 s65, s4, 12')
    A('s_lshl_b32 s66, s7, 11')
    A('s_add_u32 s65, s65, s66')
    A('s_add_u32 s65, s65, 0x%x' % WS_B)
    A('s_waitcnt lgkmcnt(0)')
    A('s_barrier')
    for t in range(4): A('ds_read_b128 v[%d:%d], v2 offset:%d' % (64 + 4 * t, 67 + 4 * t, CRED + 1024 * t))
    for t in range(4):
        A('s_waitcnt lgkmcnt(%d)' % (3 - t))
        for r in range(4): A('v_add_f32 v%d, v%d, v%d' % (64 + 4 * t + r, 64 + 4 * t + r, AC + 4 * t + r))
        A('v_cvt_pk_bf16_f32 v%d, v%d, v%d' % (64 + 4 * t, 64 + 4 * t, 65 + 4 * t))
        A('v_cvt_pk_bf16_f32 v%d, v%d, v%d' % (65 + 4 * t, 66 + 4 * t, 67 + 4 * t))
        A('buffer_store_dwordx2 v[%d:%d], v3, s[56:59], s65 offen offset:%d%s' % (64 + 4 * t, 65 + 4 * t, 512 * t, ST))
```

```python
from asmlib import *
import math
LOG2E = 1.4426950408889634
INV2PI = 1.0 / (2 * math.pi)

WS_H = 0
WS_E = 4 << 20
WS_G = WS_E + 65536
WS_C = 5 << 20
WS_B = 6 << 20
WS_END = 8 << 20

P = {n: 8 + 2 * i for i, n in enumerate(
    "x Lre Lim Bre Bim Cre Cim Aldt ADs Bu BAre BAim BBre BBim BCre BCim Bldt BDs gw out dbg ws".split())}

class VM:
    def __init__(self): self.q = []
    def issue(self, tag, n=1): self.q += [tag] * n
    def wait(self, A, tag, extra=''):
        idx = max(i for i, t in enumerate(self.q) if t == tag)
        n = len(self.q) - 1 - idx
        assert n <= 63
        A('s_waitcnt vmcnt(%d)%s' % (n, extra))

def load_kernargs(A):
    A('s_load_dwordx16 s[8:23], s[0:1], 0')
    A('s_load_dwordx16 s[24:39], s[0:1], 64')
    A('s_load_dwordx8 s[40:47], s[0:1], 128')
    A('s_load_dwordx4 s[48:51], s[0:1], 160')

def srd(A, d, base, nbytes):
    A('s_mov_b32 s%d, s%d' % (d, base))
    A('s_mov_b32 s%d, s%d' % (d + 1, base + 1))
    A('s_mov_b32 s%d, 0x%x' % (d + 2, nbytes))
    A('s_mov_b32 s%d, 0x00020000' % (d + 3))

def cexp(A, dre, dim, are, aim, k, t0, t1):
    if k == 1.0:
        A('v_exp_f32 v%d, v%d' % (t0, are))
        A('v_fract_f32 v%d, v%d' % (t1, aim))
    else:
        A('v_mul_f32 v%d, %s, v%d' % (t0, f2u(k), are))
        A('v_mul_f32 v%d, %s, v%d' % (t1, f2u(k), aim))
        A('v_exp_f32 v%d, v%d' % (t0, t0))
        A('v_fract_f32 v%d, v%d' % (t1, t1))
    A('v_cos_f32 v%d, v%d' % (dre, t1))
    A('v_sin_f32 v%d, v%d' % (dim, t1))
    A('v_mul_f32 v%d, v%d, v%d' % (dre, dre, t0))
    A('v_mul_f32 v%d, v%d, v%d' % (dim, dim, t0))

XCH = 131072
G1_LDS = XCH + 15 * 512

def gen_g1(A, ST=''):
    vm = VM()
    A('v_and_b32 v1, 63, v0')
    A('v_lshrrev_b32 v2, 6, v0')
    A('v_readfirstlane_b32 s5, v2')
    A('v_lshrrev_b32 v6, 5, v1')
    A('v_bfe_u32 v7, v1, 3, 2')
    A('v_lshl_add_u32 v7, v6, 4, v7')
    A('v_lshlrev_b32 v7, 10, v7')
    A('v_lshrrev_b32 v8, 4, v1')
    A('v_and_b32 v9, 7, v1')
    A('v_xor_b32 v8, v8, v9')
    A('v_lshl_or_b32 v2, v8, 4, v7')
    A('v_xor_b32 v3, 64, v2')
    A('v_add_u32 v3, 0x1000, v3')
    A('v_add_u32 v4, 0x2000, v2')
    A('v_add_u32 v5, 0x2000, v3')
    A('s_and_b32 s6, s5, 3')
    A('s_lshr_b32 s7, s5, 2')
    A('s_lshl_b32 s60, s4, 7')
    A('v_lshl_add_u32 v10, v1, 1, s60')
    A('v_lshrrev_b32 v11, 4, v0')
    A('v_and_b32 v12, 15, v0')
    A('s_lshl_b32 s61, s3, 15')
    A('s_add_u32 s61, s61, s60')
    A('v_lshlrev_b32 v13, 10, v11')
    A('v_lshl_add_u32 v13, v12, 3, v13')
    A('v_add_u32 v13, s61, v13')
    A('s_lshl_b32 s62, s3, 7')
    A('s_lshl_b32 s63, s4, 4')
    A('s_add_u32 s62, s62, s63')
    A('s_lshl_b32 s63, s5, 1')
    A('s_add_u32 s62, s62, s63')
    A('s_lshl_b32 s63, s62, 10')
    A('v_lshlrev_b32 v14, 4, v1')
    A('v_add_u32 v15, s63, v14')
    A('s_waitcnt lgkmcnt(0)')
    A('global_load_ushort v20, v10, s[%d:%d]' % (P['Lre'], P['Lre'] + 1))
    A('global_load_ushort v21, v10, s[%d:%d]' % (P['Lim'], P['Lim'] + 1))
    A('global_load_ushort v22, v10, s[%d:%d]' % (P['Aldt'], P['Aldt'] + 1))
    vm.issue('par', 3)
    A('global_load_dwordx2 v[24:25], v13, s[%d:%d]' % (P['Cre'], P['Cre'] + 1))
    A('global_load_dwordx2 v[26:27], v13, s[%d:%d]' % (P['Cim'], P['Cim'] + 1))
    vm.issue('C', 2)
    A('global_load_dwordx4 v[28:31], v14, s[%d:%d]' % (P['gw'], P['gw'] + 1))
    A('global_load_dwordx4 v[32:35], v15, s[%d:%d]' % (P['x'], P['x'] + 1))
    A('global_load_dwordx4 v[36:39], v15, s[%d:%d] offset:1024' % (P['x'], P['x'] + 1))
    vm.issue('gate', 3)
    A('s_bitcmp1_b32 s5, 0')
    A('s_cselect_b64 s[52:53], s[%d:%d], s[%d:%d]' % (P['Bim'], P['Bim'] + 1, P['Bre'], P['Bre'] + 1))
    A('s_lshl_b32 s64, s4, 6')
    A('s_lshr_b32 s65, s6, 1')
    A('s_lshl_b32 s65, s65, 5')
    A('s_add_u32 s64, s64, s65')
    A('s_lshl_b32 s65, s3, 7')
    A('s_lshl_b32 s66, s6, 5')
    A('s_add_u32 s65, s65, s66')
    A('s_mov_b32 s54, 0x80000')
    A('s_cmp_eq_u32 s7, 0')
    A('s_cselect_b64 s[52:53], s[%d:%d], s[52:53]' % (P['x'], P['x'] + 1))
    A('s_cselect_b32 s54, 0x200000, s54')
    A('s_cselect_b32 s64, s65, s64')
    A('s_mov_b32 s55, 0x00020000')
    A('s_lshl_b32 s64, s64, 10')
    A('s_lshl_b32 s66, s5, 12')
    srd(A, 56, P['ws'], WS_END)
    def dma(kc):
        buf = kc & 3
        A('s_add_u32 s65, s64, %d' % (kc * 128))
        for i in range(4):
            A('s_add_u32 m0, s66, %d' % (buf * 32768 + i * 1024))
            A('buffer_load_dwordx4 v%d, s[52:55], s65 offen lds' % (2 + i))
        vm.issue('d%d' % kc, 4)
    for kc in range(4): dma(kc)
    A('v_mov_b32 v16, 0')
    A('v_mov_b32 v17, 0')
    A('v_lshlrev_b32 v18, 3, v0')
    A('v_add_u32 v18, 0x%x, v18' % XCH)
    A('ds_write_b64 v18, v[16:17]')
    A('v_and_b32 v16, 31, v1')
    A('v_bfe_u32 v17, v1, 1, 3')
    A('v_xor_b32 v17, v17, v6')
    A('v_lshlrev_b32 v16, 7, v16')
    A('v_lshl_or_b32 v16, v17, 4, v16')
    A('s_lshl_b32 s67, s6, 12')
    A('s_lshl_b32 s68, s7, 13')
    A('s_add_u32 s68, s68, 0x4000')
    for ks in range(4):
        A('v_xor_b32 v17, %d, v16' % (ks * 32))
        A('v_add_u32 v%d, s67, v17' % (40 + ks))
        A('v_add_u32 v%d, s68, v17' % (44 + ks))
    vm.wait(A, 'par')
    A('v_lshlrev_b32 v20, 16, v20')
    A('v_lshlrev_b32 v21, 16, v21')
    A('v_lshlrev_b32 v22, 16, v22')
    A('v_mul_f32 v22, %s, v22' % f2u(LOG2E))
    A('v_exp_f32 v22, v22')
    A('v_cvt_pk_bf16_f32 v22, v22, v22')
    A('v_lshlrev_b32 v22, 16, v22')
    A('v_mul_f32 v48, v22, v20')
    A('v_mul_f32 v49, v22, v21')
    A('v_mul_f32 v48, %s, v48' % f2u(LOG2E))
    A('v_mul_f32 v49, %s, v49' % f2u(INV2PI))
    A('v_bfe_u32 v16, v1, 2, 1')
    A('v_bfe_u32 v17, v1, 3, 2')
    A('v_and_b32 v18, 3, v1')
    A('v_lshl_add_u32 v18, v16, 4, v18')
    A('v_lshl_add_u32 v18, v17, 2, v18')
    A('s_lshl_b32 s69, s7, 5')
    A('v_add_u32 v19, s69, v18')
    A('v_lshlrev_b32 v18, 2, v19')
    A('ds_bpermute_b32 v50, v18, v48')
    A('ds_bpermute_b32 v51, v18, v49')
    cexp(A, 52, 53, 48, 49, 1.0, 16, 17)
    A('v_add_f32 v52, -1.0, v52')
    A('v_mul_f32 v16, v20, v20')
    A('v_fmac_f32 v16, v21, v21')
    A('v_rcp_f32 v16, v16')
    A('v_mul_f32 v17, v52, v20')
    A('v_fmac_f32 v17, v53, v21')
    A('v_mul_f32 v18, v53, v20')
    A('v_fma_f32 v18, -v52, v21, v18')
    A('v_add_f32 v16, v16, v16')
    A('v_mul_f32 v52, v17, v16')
    A('v_mul_f32 v53, v18, v16')
    A('v_lshlrev_b32 v16, 4, v12')
    for e in range(4):
        A('ds_bpermute_b32 v%d, v16, v52 offset:%d' % (54 + e, 4 * e))
        A('ds_bpermute_b32 v%d, v16, v53 offset:%d' % (58 + e, 4 * e))
    vm.wait(A, 'gate')
    A('v_mov_b32 v62, 0')
    A('v_mov_b32 v63, 0')
    for e in range(4):
        A('v_dot2c_f32_bf16 v62, v%d, v%d' % (32 + e, 28 + e))
        A('v_dot2c_f32_bf16 v63, v%d, v%d' % (36 + e, 28 + e))
    for sh in (1, 2, 4, 8):
        A('v_add_f32_dpp v62, v62, v62 row_shr:%d row_mask:0xf bank_mask:0xf bound_ctrl:0' % sh)
        A('v_add_f32_dpp v63, v63, v63 row_shr:%d row_mask:0xf bank_mask:0xf bound_ctrl:0' % sh)
    A('v_add_f32_dpp v62, v62, v62 row_bcast:15 row_mask:0xa bank_mask:0xf')
    A('v_add_f32_dpp v63, v63, v63 row_bcast:15 row_mask:0xa bank_mask:0xf')
    A('v_add_f32_dpp v62, v62, v62 row_bcast:31 row_mask:0xc bank_mask:0xf')
    A('v_add_f32_dpp v63, v63, v63 row_bcast:31 row_mask:0xc bank_mask:0xf')
    A('v_cvt_pk_bf16_f32 v62, v62, v63')
    A('v_and_b32 v63, 0xffff0000, v62')
    A('v_lshlrev_b32 v62, 16, v62')
    for r in (62, 63):
        A('v_mul_f32 v%d, %s, v%d' % (r, f2u(-LOG2E), r))
    for r in (62, 63):
        A('v_exp_f32 v%d, v%d' % (r, r))
    for r in (62, 63):
        A('v_add_f32 v%d, 1.0, v%d' % (r, r))
    for r in (62, 63):
        A('v_rcp_f32 v%d, v%d' % (r, r))
    A('v_cvt_pk_bf16_f32 v62, v62, v63')
    A('v_and_b32 v63, 0xffff0000, v62')
    A('v_lshlrev_b32 v62, 16, v62')
    A('v_sub_f32 v28, 1.0, v62')
    A('v_sub_f32 v29, 1.0, v63')
    A('v_cvt_pk_bf16_f32 v62, v62, v28')
    A('v_cvt_pk_bf16_f32 v63, v63, v29')
    A('s_lshl_b32 s63, s62, 2')
    A('s_add_u32 s63, s63, 0x%x' % WS_G)
    A('v_mov_b32 v28, 0')
    A('s_mov_b64 s[70:71], exec')
    A('s_mov_b32 exec_lo, 0')
    A('s_mov_b32 exec_hi, 0x80000000')
    A('buffer_store_dwordx2 v[62:63], v28, s[56:59], s63 offen' + ST)
    vm.issue('st')
    A('s_mov_b64 exec, s[70:71]')
    A('s_waitcnt lgkmcnt(0)')
    for e in range(4):
        cr, ci = 32, 33
        if e & 1:
            A('v_and_b32 v32, 0xffff0000, v%d' % (24 + e // 2))
            A('v_and_b32 v33, 0xffff0000, v%d' % (26 + e // 2))
        else:
            A('v_lshlrev_b32 v32, 16, v%d' % (24 + e // 2))
            A('v_lshlrev_b32 v33, 16, v%d' % (26 + e // 2))
        A('v_mul_f32 v%d, v%d, v32' % (34 + e, 54 + e))
        A('v_mul_f32 v%d, v%d, v33' % (54 + e, 54 + e))
        A('v_fma_f32 v%d, -v%d, v33, v%d' % (34 + e, 58 + e, 34 + e))
        A('v_fma_f32 v%d, -v%d, v32, -v%d' % (54 + e, 58 + e, 54 + e))
    A('v_cvt_pk_bf16_f32 v24, v34, v35')
    A('v_cvt_pk_bf16_f32 v25, v36, v37')
    A('v_cvt_pk_bf16_f32 v26, v54, v55')
    A('v_cvt_pk_bf16_f32 v27, v56, v57')
    A('v_lshrrev_b32 v32, 8, v0')
    A('v_lshlrev_b32 v32, 15, v32')
    A('v_bfe_u32 v33, v0, 3, 1')
    A('v_lshl_or_b32 v32, v33, 10, v32')
    A('v_bfe_u32 v33, v0, 4, 4')
    A('v_lshl_or_b32 v32, v33, 4, v32')
    A('v_and_b32 v33, 3, v0')
    A('v_lshl_or_b32 v32, v33, 8, v32')
    A('v_bfe_u32 v33, v0, 2, 1')
    A('v_lshl_or_b32 v32, v33, 3, v32')
    A('s_lshl_b32 s63, s3, 16')
    A('s_lshl_b32 s69, s4, 11')
    A('s_add_u32 s63, s63, s69')
    A('s_add_u32 s63, s63, 0x%x' % WS_C)
    A('s_add_u32 s69, s63, 0x4000')
    A('buffer_store_dwordx2 v[24:25], v32, s[56:59], s63 offen' + ST)
    A('buffer_store_dwordx2 v[26:27], v32, s[56:59], s69 offen' + ST)
    vm.issue('st', 2)
    cexp(A, 52, 53, 50, 51, 1.0, 16, 17)
    cexp(A, 54, 55, 50, 51, 16.0, 16, 17)
    ACR, ACI, FR = 64, 80, 96
    for kc in range(8):
        buf = kc & 3
        vm.wait(A, 'd%d' % kc)
        A('s_barrier')
        if 1 <= kc <= 4: dma(kc + 3)
        if kc in (2, 4, 6):
            for r in range(40, 48): A('v_xor_b32 v%d, 0x10000, v%d' % (r, r))
        off = (buf & 1) * 32768
        for ks in range(4):
            f = FR + ks * 12
            A('ds_read_b128 v[%d:%d], v%d offset:%d' % (f, f + 3, 40 + ks, off))
            A('ds_read_b128 v[%d:%d], v%d offset:%d' % (f + 4, f + 7, 44 + ks, off))
            A('ds_read_b128 v[%d:%d], v%d offset:%d' % (f + 8, f + 11, 44 + ks, off + 4096))
        for ks in range(4):
            f = FR + ks * 12
            first = (kc == 0 and ks == 0)
            A('s_waitcnt lgkmcnt(%d)' % (10 - 3 * ks))
            A('v_mfma_f32_32x32x16_bf16 v[%d:%d], v[%d:%d], v[%d:%d], %s' % (ACR, ACR + 15, f, f + 3, f + 4, f + 7, '0' if first else v(ACR, 16)))
            A('s_waitcnt lgkmcnt(%d)' % (9 - 3 * ks))
            A('v_mfma_f32_32x32x16_bf16 v[%d:%d], v[%d:%d], v[%d:%d], %s' % (ACI, ACI + 15, f, f + 3, f + 8, f + 11, '0' if first else v(ACI, 16)))
    A('v_and_b32 v16, 31, v1')
    A('v_lshlrev_b32 v16, 3, v16')
    A('v_lshl_add_u32 v16, v6, 9, v16')
    A('s_lshl_b32 s63, s6, 10')
    A('s_lshl_b32 s69, s7, 8')
    A('s_add_u32 s63, s63, s69')
    A('s_add_u32 s63, s63, 0x%x' % XCH)
    A('v_add_u32 v18, s63, v16')
    LR, LI, QR, QI = 52, 53, 54, 55
    er, ei, tr, ti = ACR, ACI, 20, 21
    for j in range(1, 16):
        nr, ni = (20, 21) if (j & 1) else (22, 23)
        A('v_fma_f32 v%d, v%d, v%d, v%d' % (nr, LR, er, ACR + j))
        A('v_fma_f32 v%d, v%d, v%d, v%d' % (ni, LR, ei, ACI + j))
        A('v_fma_f32 v%d, -v%d, v%d, v%d' % (nr, LI, ei, nr))
        A('v_fma_f32 v%d, v%d, v%d, v%d' % (ni, LI, er, ni))
        er, ei = nr, ni
    assert (er, ei) == (20, 21)
    A('ds_write_b64 v18, v[20:21] offset:%d' % (7 * 512))
    A('s_waitcnt lgkmcnt(0)')
    A('s_barrier')
    for m in range(7):
        A('ds_read_b64 v[%d:%d], v18 offset:%d' % (24 + 2 * m, 25 + 2 * m, m * 512))
    A('s_lshl_b32 s63, s4, 6')
    A('v_add_u32 v19, s63, v19')
    A('v_lshlrev_b32 v17, 4, v19')
    A('v_lshl_add_u32 v17, v6, 14, v17')
    A('s_lshl_b32 s63, s3, 18')
    A('s_lshr_b32 s69, s6, 1')
    A('s_lshl_b32 s69, s69, 17')
    A('s_add_u32 s63, s63, s69')
    A('s_and_b32 s69, s6, 1')
    A('s_lshl_b32 s69, s69, 15')
    A('s_add_u32 s72, s63, s69')
    A('s_add_u32 s73, s72, 0x2000')
    A('s_add_u32 s74, s72, 0x10000')
    A('s_add_u32 s75, s72, 0x12000')
    for m in range(1, 7):
        A('s_waitcnt lgkmcnt(%d)' % (6 - m))
        pr, pi, cr, ci = 22 + 2 * m, 23 + 2 * m, 24 + 2 * m, 25 + 2 * m
        A('v_fmac_f32 v%d, v%d, v%d' % (cr, QR, pr))
        A('v_fmac_f32 v%d, v%d, v%d' % (ci, QR, pi))
        A('v_fma_f32 v%d, -v%d, v%d, v%d' % (cr, QI, pi, cr))
        A('v_fmac_f32 v%d, v%d, v%d' % (ci, QI, pr))
    pr, pi = 36, 37
    for j in range(16):
        cr, ci = ACR + j, ACI + j
        A('v_fmac_f32 v%d, v%d, v%d' % (cr, LR, pr))
        A('v_fmac_f32 v%d, v%d, v%d' % (ci, LR, pi))
        A('v_fma_f32 v%d, -v%d, v%d, v%d' % (cr, LI, pi, cr))
        A('v_fmac_f32 v%d, v%d, v%d' % (ci, LI, pr))
        pr, pi = cr, ci
        if j & 1:
            A('v_cvt_pk_bf16_f32 v%d, v%d, v%d' % (96 + j // 2, ACR + j - 1, ACR + j))
            A('v_cvt_pk_bf16_f32 v%d, v%d, v%d' % (104 + j // 2, ACI + j - 1, ACI + j))
        if j == 7:
            A('buffer_store_dwordx4 v[96:99], v17, s[56:59], s72 offen' + ST)
            A('buffer_store_dwordx4 v[104:107], v17, s[56:59], s74 offen' + ST)
    A('buffer_store_dwordx4 v[100:103], v17, s[56:59], s73 offen' + ST)
    A('buffer_store_dwordx4 v[108:111], v17, s[56:59], s75 offen' + ST)
    l = A.label('noE')
    A('s_cmp_lg_u32 s6, 3')
    A('s_cbranch_scc1 ' + l)
    A('v_cvt_pk_bf16_f32 v20, v%d, v%d' % (ACR + 15, ACI + 15))
    A('v_lshlrev_b32 v17, 4, v19')
    A('s_lshr_b32 s63, s3, 2')
    A('s_lshl_b32 s63, s63, 13')
    A('s_and_b32 s69, s3, 3')
    A('s_lshl_b32 s69, s69, 2')
    A('s_add_u32 s63, s63, s69')
    A('s_add_u32 s63, s63, 0x%x' % WS_E)
    A('s_mov_b32 exec_lo, 0')
    A('buffer_store_dword v20, v17, s[56:59], s63 offen' + ST)
    A(l + ':')
    A('s_endpgm')
```

```python
from asmlib import *
from g1 import *

RED = 131072
G2_LDS = RED + 16384

def gen_g2(A):
    vm = VM()
    end = A.label('end2')
    load_kernargs(A)
    A('s_cmp_ge_u32 s2, 256')
    A('s_cbranch_scc1 ' + end)
    A('s_and_b32 s3, s2, 7')
    A('s_lshl_b32 s3, s3, 2')
    A('s_lshr_b32 s4, s2, 6')
    A('s_add_u32 s3, s3, s4')
    A('s_bfe_u32 s4, s2, 0x30003')
    A('s_lshr_b32 s6, s3, 1')
    A('v_and_b32 v1, 63, v0')
    A('v_lshrrev_b32 v2, 6, v0')
    A('v_readfirstlane_b32 s5, v2')
    A('v_lshlrev_b32 v2, 1, v0')
    A('v_lshlrev_b32 v3, 4, v0')
    A('v_lshlrev_b32 v4, 4, v1')
    A('s_lshl_b32 s60, s3, 17')
    A('s_and_b32 s7, s5, 3')
    A('s_lshr_b32 s61, s5, 2')
    A('s_lshl_b32 s62, s4, 2')
    A('s_add_u32 s62, s62, s7')
    A('s_lshl_b32 s63, s62, 15')
    A('s_lshl_b32 s64, s61, 14')
    A('s_add_u32 s63, s63, s64')
    A('s_add_u32 s63, s63, 0x%x' % WS_C)
    A('s_waitcnt lgkmcnt(0)')
    srd(A, 52, P['ws'], WS_END)
    A('global_load_ushort v8, v2, s[%d:%d]' % (P['Lre'], P['Lre'] + 1))
    A('global_load_ushort v9, v2, s[%d:%d]' % (P['Lim'], P['Lim'] + 1))
    A('global_load_ushort v10, v2, s[%d:%d]' % (P['Aldt'], P['Aldt'] + 1))
    vm.issue('par', 3)
    EB = 12
    l = A.label('noE')
    for q in range(4):
        A('s_cmp_le_u32 s6, %d' % (4 * q))
        A('s_cbranch_scc1 ' + l)
        A('s_mov_b32 s64, 0x%x' % (WS_E + q * 8192))
        A('buffer_load_dwordx4 v[%d:%d], v3, s[52:55], s64 offen' % (EB + 4 * q, EB + 4 * q + 3))
    A(l + ':')
    vm.issue('E')
    HB = 64
    for o in range(8):
        A('s_add_u32 s64, s60, %d' % (o * 8192))
        A('s_add_u32 s65, s60, %d' % (o * 8192 + 65536))
        A('buffer_load_dwordx4 v[%d:%d], v3, s[52:55], s64 offen' % (HB + 8 * o, HB + 8 * o + 3))
        A('buffer_load_dwordx4 v[%d:%d], v3, s[52:55], s65 offen' % (HB + 8 * o + 4, HB + 8 * o + 7))
        vm.issue('H%d' % o, 2)
    CB = 128
    for s_ in range(16):
        if s_ % 4 == 0 and s_: A('s_add_u32 s63, s63, 4096')
        A('buffer_load_dwordx4 v[%d:%d], v4, s[52:55], s63 offen offset:%d' % (CB + 4 * s_, CB + 4 * s_ + 3, (s_ % 4) * 1024))
        vm.issue('C%d' % s_)
    XF, BF, GF, DS = 192, 200, 204, 212
    A('v_and_b32 v5, 15, v1')
    A('v_lshrrev_b32 v6, 4, v1')
    A('s_lshl_b32 s66, s3, 6')
    A('s_lshl_b32 s67, s61, 5')
    A('s_add_u32 s66, s66, s67')
    A('s_lshl_b32 s67, s62, 4')
    A('s_lshl_b32 s68, s66, 10')
    A('s_and_b32 s69, s67, 0x1e0')
    A('s_lshl_b32 s69, s69, 1')
    A('s_add_u32 s68, s68, s69')
    A('v_lshlrev_b32 v7, 10, v5')
    A('v_lshl_add_u32 v7, v6, 4, v7')
    A('v_add_u32 v7, s68, v7')
    A('v_add_u32 v11, 0x4000, v7')
    A('global_load_dwordx4 v[%d:%d], v7, s[%d:%d]' % (XF, XF + 3, P['x'], P['x'] + 1))
    A('global_load_dwordx4 v[%d:%d], v11, s[%d:%d]' % (XF + 4, XF + 7, P['x'], P['x'] + 1))
    A('s_lshl_b32 s68, s67, 12')
    A('s_lshl_b32 s69, s66, 1')
    A('s_add_u32 s68, s68, s69')
    A('s_add_u32 s68, s68, 0x%x' % WS_B)
    A('v_lshlrev_b32 v7, 12, v5')
    A('v_lshl_add_u32 v7, v6, 3, v7')
    A('buffer_load_dwordx2 v[%d:%d], v7, s[52:55], s68 offen' % (BF, BF + 1))
    A('buffer_load_dwordx2 v[%d:%d], v7, s[52:55], s68 offen offset:32' % (BF + 2, BF + 3))
    A('s_lshl_b32 s68, s66, 2')
    A('s_add_u32 s68, s68, 0x%x' % WS_G)
    A('v_lshlrev_b32 v7, 4, v6')
    A('buffer_load_dwordx4 v[%d:%d], v7, s[52:55], s68 offen' % (GF, GF + 3))
    A('buffer_load_dwordx4 v[%d:%d], v7, s[52:55], s68 offen offset:64' % (GF + 4, GF + 7))
    A('v_add_u32 v7, s67, v5')
    A('v_lshlrev_b32 v7, 1, v7')
    A('global_load_ushort v%d, v7, s[%d:%d]' % (DS, P['ADs'], P['ADs'] + 1))
    vm.issue('epi', 7)
    srd(A, 56, P['out'], 4194304)
    A('v_lshlrev_b32 v213, 13, v6')
    A('v_lshl_add_u32 v213, v5, 2, v213')
    A('s_lshl_b32 s70, s66, 11')
    A('s_lshl_b32 s71, s67, 2')
    A('s_add_u32 s70, s70, s71')
    A('v_and_b32 v7, 7, v0')
    A('v_lshlrev_b32 v28, 7, v0')
    A('v_lshl_or_b32 v28, v7, 4, v28')
    A('v_lshrrev_b32 v7, 2, v1')
    A('v_and_b32 v11, 7, v7')
    A('v_bfe_u32 v29, v1, 1, 1')
    A('v_xor_b32 v11, v11, v29')
    A('v_lshlrev_b32 v7, 7, v7')
    A('v_lshl_or_b32 v7, v11, 4, v7')
    A('v_and_b32 v11, 1, v1')
    A('v_lshl_or_b32 v7, v11, 3, v7')
    A('s_lshl_b32 s64, s61, 16')
    A('v_add_u32 v7, s64, v7')
    for t in range(4):
        A('v_xor_b32 v%d, %d, v7' % (214 + t, 32 * t))
    vm.wait(A, 'E')
    A('v_lshlrev_b32 v8, 16, v8')
    A('v_lshlrev_b32 v9, 16, v9')
    A('v_lshlrev_b32 v10, 16, v10')
    A('v_mul_f32 v10, %s, v10' % f2u(LOG2E))
    A('v_exp_f32 v10, v10')
    A('v_cvt_pk_bf16_f32 v10, v10, v10')
    A('v_lshlrev_b32 v10, 16, v10')
    A('v_mul_f32 v8, v10, v8')
    A('v_mul_f32 v9, v10, v9')
    A('v_mul_f32 v8, %s, v8' % f2u(LOG2E))
    A('v_mul_f32 v9, %s, v9' % f2u(INV2PI))
    PW = 32
    cexp(A, 48, 49, 8, 9, 128.0, 2, 7)
    cexp(A, PW, PW + 1, 8, 9, 1.0, 2, 7)
    A('v_mov_b32 v50, 0')
    A('v_mov_b32 v51, 0')
    l = A.label('Sdone')
    for c in range(15):
        A('s_cmp_le_u32 s6, %d' % c)
        A('s_cbranch_scc1 ' + l)
        A('v_lshlrev_b32 v2, 16, v%d' % (EB + c))
        A('v_and_b32 v7, 0xffff0000, v%d' % (EB + c))
        A('v_fmac_f32 v2, v48, v50')
        A('v_fmac_f32 v7, v48, v51')
        A('v_fma_f32 v2, -v49, v51, v2')
        A('v_fma_f32 v51, v49, v50, v7')
        A('v_mov_b32 v50, v2')
    A(l + ':')
    def cmul(dr, di, ar, ai, br, bi):
        A('v_mul_f32 v%d, v%d, v%d' % (dr, ar, br))
        A('v_mul_f32 v%d, v%d, v%d' % (di, ar, bi))
        A('v_fma_f32 v%d, -v%d, v%d, v%d' % (dr, ai, bi, dr))
        A('v_fmac_f32 v%d, v%d, v%d' % (di, ai, br))
    pw = lambda e: (PW + 2 * (e - 1), PW + 2 * (e - 1) + 1)
    cmul(*pw(2), *pw(1), *pw(1))
    cmul(*pw(3), *pw(2), *pw(1))
    cmul(*pw(4), *pw(2), *pw(2))
    for e in range(5, 9): cmul(*pw(e), *pw(4), *pw(e - 4))
    l = A.label('even')
    A('s_bitcmp0_b32 s3, 0')
    A('s_cbranch_scc1 ' + l)
    cexp(A, 48, 49, 8, 9, 64.0, 2, 7)
    cmul(52, 53, 48, 49, 50, 51)
    A('v_mov_b32 v50, v52')
    A('v_mov_b32 v51, v53')
    A(l + ':')
    zr, zi = 50, 51
    for o in range(8):
        vm.wait(A, 'H%d' % o)
        hr, hi = HB + 8 * o, HB + 8 * o + 4
        for q in range(4):
            T = 54 + 4 * (q & 1)
            A('v_lshlrev_b32 v%d, 16, v%d' % (T, hr + q))
            A('v_and_b32 v%d, 0xffff0000, v%d' % (T + 1, hr + q))
            A('v_lshlrev_b32 v%d, 16, v%d' % (T + 2, hi + q))
            A('v_and_b32 v%d, 0xffff0000, v%d' % (T + 3, hi + q))
            for u in range(2):
                pr, pi = pw(2 * q + u + 1)
                A('v_fmac_f32 v%d, v%d, v%d' % (T + u, pr, zr))
                A('v_fmac_f32 v%d, v%d, v%d' % (T + 2 + u, pr, zi))
            for u in range(2):
                pr, pi = pw(2 * q + u + 1)
                A('v_fma_f32 v%d, -v%d, v%d, v%d' % (T + u, pi, zi, T + u))
                A('v_fmac_f32 v%d, v%d, v%d' % (T + 2 + u, pi, zr))
            A('v_cvt_pk_bf16_f32 v%d, v%d, v%d' % (hr + q, T, T + 1))
            A('v_cvt_pk_bf16_f32 v%d, v%d, v%d' % (hi + q, T + 2, T + 3))
        A('v_xor_b32 v2, %d, v28' % (16 * o))
        A('v_add_u32 v7, 0x10000, v2')
        A('ds_write_b128 v2, v[%d:%d]' % (hr, hr + 3))
        A('ds_write_b128 v7, v[%d:%d]' % (hi, hi + 3))
        if o < 7:
            nr, ni = (52, 53) if zr == 50 else (50, 51)
            cmul(nr, ni, *pw(8), zr, zi)
            zr, zi = nr, ni
    A('s_waitcnt lgkmcnt(0)')
    A('s_barrier')
    AC = 32
    FR = 64
    def reads(s_):
        f = FR + (s_ & 1) * 16
        for t in range(4):
            A('ds_read_b64_tr_b16 v[%d:%d], v%d offset:%d' % (f + 4 * t, f + 4 * t + 1, 214 + t, s_ * 4096))
            A('ds_read_b64_tr_b16 v[%d:%d], v%d offset:%d' % (f + 4 * t + 2, f + 4 * t + 3, 214 + t, s_ * 4096 + 2048))
    reads(0)
    for s_ in range(16):
        f = FR + (s_ & 1) * 16
        vm.wait(A, 'C%d' % s_)
        for t in range(4):
            if s_ < 15:
                f2 = FR + ((s_ + 1) & 1) * 16
                A('ds_read_b64_tr_b16 v[%d:%d], v%d offset:%d' % (f2 + 4 * t, f2 + 4 * t + 1, 214 + t, (s_ + 1) * 4096))
                A('ds_read_b64_tr_b16 v[%d:%d], v%d offset:%d' % (f2 + 4 * t + 2, f2 + 4 * t + 3, 214 + t, (s_ + 1) * 4096 + 2048))
                A('s_waitcnt lgkmcnt(8)')
            else:
                A('s_waitcnt lgkmcnt(%d)' % (6 - 2 * t))
            A('v_mfma_f32_16x16x32_bf16 v[%d:%d], v[%d:%d], v[%d:%d], %s' % (
                AC + 4 * t, AC + 4 * t + 3, f + 4 * t, f + 4 * t + 3, CB + 4 * s_, CB + 4 * s_ + 3,
                '0' if s_ == 0 else v(AC + 4 * t, 4)))
    vm.wait(A, 'epi')
    A('s_and_b32 s64, s7, 1')
    A('s_lshl_b32 s64, s64, 4')
    A('v_add_u32 v2, s64, v5')
    A('v_and_b32 v7, 1, v5')
    A('v_lshlrev_b32 v7, 4, v7')
    A('v_lshlrev_b32 v%d, v7, v%d' % (DS, DS))
    A('v_lshrrev_b32 v2, 1, v2')
    A('v_lshlrev_b32 v7, 2, v6')
    A('v_sub_u32 v2, v2, v7')
    for r in range(4):
        A('v_cmp_eq_u32 vcc, %d, v2' % r)
        A('v_cndmask_b32 v%d, 0, v%d, vcc' % (56 + r, DS))
    A('s_lshl_b32 s64, s5, 11')
    A('s_add_u32 s64, s64, 0x%x' % RED)
    A('v_add_u32 v2, s64, v4')
    A('v_xor_b32 v7, 0x2000, v2')
    l1, l2 = A.label('pl1'), A.label('plj')
    A('s_cmp_eq_u32 s61, 0')
    A('s_cbranch_scc0 ' + l1)
    A('ds_write_b128 v2, v[40:43]')
    A('ds_write_b128 v2, v[44:47] offset:1024')
    A('v_mfma_f32_16x16x32_bf16 v[48:51], v[%d:%d], v[56:59], v[32:35]' % (XF, XF + 3))
    A('v_mfma_f32_16x16x32_bf16 v[52:55], v[%d:%d], v[56:59], v[36:39]' % (XF + 4, XF + 7))
    A('s_branch ' + l2)
    A(l1 + ':')
    A('ds_write_b128 v2, v[32:35]')
    A('ds_write_b128 v2, v[36:39] offset:1024')
    A('v_mfma_f32_16x16x32_bf16 v[48:51], v[%d:%d], v[56:59], v[40:43]' % (XF, XF + 3))
    A('v_mfma_f32_16x16x32_bf16 v[52:55], v[%d:%d], v[56:59], v[44:47]' % (XF + 4, XF + 7))
    A(l2 + ':')
    for i in range(2):
        for r in range(4):
            k = 4 * i + r
            if r & 1: A('v_and_b32 v%d, 0xffff0000, v%d' % (64 + k, BF + 2 * i + r // 2))
            else: A('v_lshlrev_b32 v%d, 16, v%d' % (64 + k, BF + 2 * i + r // 2))
            A('v_and_b32 v%d, 0xffff0000, v%d' % (80, GF + k))
            A('v_lshlrev_b32 v%d, 16, v%d' % (72 + k, GF + k))
            A('v_mul_f32 v%d, v80, v%d' % (64 + k, 64 + k))
    A('s_waitcnt lgkmcnt(0)')
    A('s_barrier')
    A('ds_read_b128 v[84:87], v7')
    A('ds_read_b128 v[88:91], v7 offset:1024')
    A('s_add_u32 s71, s70, 0x8000')
    for i in range(2):
        A('s_waitcnt lgkmcnt(%d)' % (1 - i))
        for r in range(4):
            k = 4 * i + r
            A('v_add_f32 v%d, v%d, v%d' % (84 + k, 84 + k, 48 + k))
            A('v_fmac_f32 v%d, v%d, v%d' % (64 + k, 72 + k, 84 + k))
        for r in range(4):
            k = 4 * i + r
            if r < 2:
                A('buffer_store_dword v%d, v213, s[56:59], s%d offen offset:%d' % (64 + k, 70 + i, r * 2048))
            else:
                if r == 2: A('s_add_u32 s72, s%d, 4096' % (70 + i))
                A('buffer_store_dword v%d, v213, s[56:59], s72 offen offset:%d' % (64 + k, (r - 2) * 2048))
    A(end + ':')
    A('s_endpgm')
```

```python
import sys
from asmlib import *
from g1 import *
from g2 import *
try:
    from cv import *
except ImportError:
    gen_cv = None

ref = open('gated_mix__ssm_conv_s5__ssm_conv_s4__prompt.s.ref').read().split('\n')
hdr = [l for l in ref if l.startswith(';') and '@launch' not in l and 'Override' not in l and 'grid=ceil' not in l]

def kernel(name, body, vgpr):
    lines, n = fix_hazards(body)
    sys.stderr.write('%s: %d lines, %d nops inserted\n' % (name, len(lines), n))
    t = ['.globl ' + name, '.p2align 8', '.type %s,@function' % name, name + ':'] + lines
    acc = (vgpr + 3) // 4 * 4
    d = ['.p2align 6', '.amdhsa_kernel ' + name, '  .amdhsa_next_free_vgpr %d' % vgpr, '  .amdhsa_next_free_sgpr 102',
         '  .amdhsa_accum_offset %d' % min(acc, 256), '  .amdhsa_group_segment_fixed_size 0', '  .amdhsa_kernarg_size 176',
         '  .amdhsa_user_sgpr_count 2', '  .amdhsa_user_sgpr_kernarg_segment_ptr 1',
         '  .amdhsa_system_sgpr_workgroup_id_x 1', '.end_amdhsa_kernel']
    return t, d

def build(opts):
    A = Asm()
    load_kernargs(A)
    A('s_cmp_ge_u32 s2, 256')
    A('s_cbranch_scc1 L_end1')
    A('s_and_b32 s3, s2, 7')
    A('s_lshr_b32 s4, s2, 3')
    A('s_cmp_ge_u32 s4, 16')
    A('s_cbranch_scc1 L_conv')
    A('s_lshl_b32 s3, s3, 1')
    A('s_lshr_b32 s5, s4, 3')
    A('s_add_u32 s3, s3, s5')
    A('s_and_b32 s4, s4, 7')
    gen_g1(A, opts.get('st', ''))
    A('L_conv:')
    lds1 = G1_LDS
    if gen_cv is not None:
        gen_cv(A, opts)
        lds1 = max(lds1, CV_LDS)
    A('L_end1:')
    A('s_endpgm')
    t1, d1 = kernel('mix_a_kernel', A.l, 256)
    B = Asm(); B.uid = 1000
    gen_g2(B)
    t2, d2 = kernel('mix_b_kernel', B.l, 256)
    out = hdr + ['; @launch kernel=mix_a_kernel grid=(256,1,1) block=(512,1,1) lds=%d' % lds1,
                 '; @launch kernel=mix_b_kernel grid=(256,1,1) block=(512,1,1) lds=%d' % G2_LDS,
                 '.amdgcn_target "amdgcn-amd-amdhsa--gfx950"', '.text'] + t1 + t2 + ['.section .rodata,"a"'] + d1 + d2
    return '\n'.join(out) + '\n'

if __name__ == '__main__':
    path = sys.argv[1]
    opts = dict(kv.split('=', 1) for kv in sys.argv[2:])
    if 'st' in opts: opts['st'] = ' ' + opts['st'].replace('+', ' ')
    open(path, 'w').write(build(opts))
```

```python
from asmlib import *
from g1 import *

FT = 0
FTS = 2064
XT = 117760
XTS = 4608
KT = XT + 4 * XTS
KCP = 2496
KTS = 2 * KCP
CV_LDS = KT + 4 * KTS + 128
CRED = 0

class Stream:
    def __init__(self, A, look=10):
        self.A = A; self.reads = []; self.ops = []; self.look = look
    def read(self, texts, after=None):
        self.reads.append((texts, after)); return len(self.reads) - 1
    def op(self, text, needs=()):
        self.ops.append((text, tuple(needs))); return len(self.ops) - 1
    def emit(self):
        A = self.A
        nxt = 0
        issued = []
        cnt = 0
        done = 0
        for j, (text, needs) in enumerate(self.ops):
            mx = max(needs) if needs else -1
            budget = 2 if nxt > mx else 99
            while nxt < len(self.reads):
                texts, after = self.reads[nxt]
                if nxt > mx:
                    if budget <= 0: break
                    if after is not None and after >= j: break
                    if cnt + len(texts) - done > self.look: break
                else:
                    assert after is None or after < j, (j, nxt, after)
                    if cnt + len(texts) - done > 15:
                        k = cnt + len(texts) - 15
                        A('s_waitcnt lgkmcnt(%d)' % (cnt - k)); done = k
                for t in texts: A(t)
                cnt += len(texts); issued.append(cnt); nxt += 1
                budget -= len(texts)
            if needs:
                k = max(issued[n] for n in needs)
                if k > done:
                    A('s_waitcnt lgkmcnt(%d)' % (cnt - k)); done = k
            A(text)
        assert nxt == len(self.reads)

def gen_cv(A, opts):
    ST = opts.get('st', '')
    vm = VM()
    A('v_and_b32 v1, 63, v0')
    A('v_lshrrev_b32 v2, 6, v0')
    A('v_readfirstlane_b32 s5, v2')
    A('s_lshl_b32 s3, s3, 6')
    A('s_and_b32 s4, s4, 15')
    A('s_lshl_b32 s4, s4, 2')
    A('s_add_u32 s3, s3, s4')
    A('s_lshl_b32 s60, s3, 1')
    A('v_lshlrev_b32 v2, 12, v0')
    A('v_add_u32 v2, s60, v2')
    A('s_and_b32 s6, s5, 3')
    A('s_lshr_b32 s7, s5, 2')
    A('s_add_u32 s4, s3, s6')
    A('s_lshl_b32 s60, s4, 8')
    A('s_lshl_b32 s61, s7, 7')
    A('s_add_u32 s60, s60, s61')
    A('v_lshl_add_u32 v3, v1, 1, s60')
    A('s_lshl_b32 s61, s4, 1')
    A('v_mov_b32 v4, s61')
    A('s_waitcnt lgkmcnt(0)')
    for i, n in enumerate(('BAre', 'BAim', 'BBre', 'BBim', 'BCre', 'BCim')):
        A('global_load_ushort v%d, v3, s[%d:%d]' % (8 + i, P[n], P[n] + 1))
    A('global_load_ushort v14, v4, s[%d:%d]' % (P['Bldt'], P['Bldt'] + 1))
    A('global_load_ushort v15, v4, s[%d:%d]' % (P['BDs'], P['BDs'] + 1))
    vm.issue('par', 8)
    XG = 240
    for r in range(4):
        A('global_load_dwordx2 v[%d:%d], v2, s[%d:%d] offset:%d%s' % (XG + 2 * r, XG + 2 * r + 1, P['x'], P['x'] + 1, 1024 * r, opts.get('xl', '')))
    vm.issue('x', 4)
    srd(A, 56, P['ws'], WS_END)
    A('s_mul_i32 s62, s6, %d' % KTS)
    A('s_add_u32 s62, s62, %d' % KT)
    A('s_mul_i32 s63, s7, %d' % KCP)
    A('s_add_u32 s63, s63, s62')
    A('s_mul_i32 s64, s6, %d' % XTS)
    A('s_add_u32 s64, s64, %d' % XT)
    for r in range(4): A('v_mov_b32 v%d, 0' % (16 + r))
    A('v_lshl_add_u32 v5, v1, 4, s63')
    A('ds_write_b128 v5, v[16:19]')
    A('ds_write_b128 v5, v[16:19] offset:1024')
    A('v_lshl_add_u32 v5, v1, 3, s63')
    A('ds_write_b64 v5, v[16:17] offset:2048')
    A('v_lshl_add_u32 v5, v1, 3, s64')
    A('ds_write_b64 v5, v[16:17]')
    A('v_and_b32 v6, 15, v1')
    A('v_lshrrev_b32 v7, 4, v1')
    A('v_mul_u32_u24 v5, 49, v7')
    A('v_add3_u32 v5, v5, v6, s7')
    A('v_lshl_add_u32 v5, v5, 1, s63')
    A('v_lshl_add_u32 v16, v7, 1, 2')
    A('v_mov_b32 v17, 0x3f80')
    A('v_cmp_le_u32 vcc, v6, v16')
    A('s_and_saveexec_b64 s[70:71], vcc')
    A('ds_write_b16 v5, v17 offset:%d' % (2 * (1024 + 26)))
    A('s_mov_b64 exec, s[70:71]')
    A('s_lshl_b32 s65, s6, 9')
    A('s_lshl_b32 s66, s7, 8')
    A('s_add_u32 s65, s65, s66')
    A('s_add_u32 s66, s65, %d' % (31 * FTS))
    A('s_mov_b32 m0, s65')
    STAMP['n'] = 2
    stamp(A)
    vm.wait(A, 'par')
    for r in range(8, 16): A('v_lshlrev_b32 v%d, 16, v%d' % (r, r))
    A('v_mul_f32 v14, %s, v14' % f2u(LOG2E))
    A('v_exp_f32 v14, v14')
    A('v_cvt_pk_bf16_f32 v14, v14, v14')
    A('v_lshlrev_b32 v14, 16, v14')
    for r in (8, 9, 10, 11): A('v_mul_f32 v%d, v14, v%d' % (r, r))
    A('v_mul_f32 v8, %s, v8' % f2u(LOG2E))
    A('v_mul_f32 v9, %s, v9' % f2u(INV2PI))
    def cm(d, a_, b_):
        return ['v_mul_f32 v%d, v%d, v%d' % (d, a_, b_), 'v_mul_f32 v%d, v%d, v%d' % (d + 1, a_, b_ + 1),
                'v_fma_f32 v%d, -v%d, v%d, v%d' % (d, a_ + 1, b_ + 1, d), 'v_fmac_f32 v%d, v%d, v%d' % (d + 1, a_ + 1, b_)]
    pk = [0]
    hi_m0 = [False]
    def put(row, z, neg=False):
        t = 20 + (pk[0] & 3); pk[0] += 1
        off = row * FTS - (31 * FTS if hi_m0[0] else 0)
        assert 0 <= off < 65536
        return ['v_cvt_pk_bf16_f32 v%d, v%d, %sv%d' % (t, z, '-' if neg else '', z + 1),
                'ds_write_addtid_b32 v%d offset:%d' % (t, off)]
    def inter(*seqs):
        n = max(len(q) for q in seqs)
        for i in range(n):
            for q in seqs:
                if i < len(q): A(q[i])
    F = lambda b: 32 + 2 * b
    cexp(A, F(1), F(1) + 1, 8, 9, 1.0, 16, 17)
    cexp(A, F(16), F(16) + 1, 8, 9, 16.0, 18, 19)
    O = lambda k: 66 + 2 * k
    cexp(A, O(1), O(1) + 1, 8, 9, 256.0, 16, 17)
    G0, G1 = 24, 26
    inter(cm(G0, 12, 10), cm(F(2), F(1), F(1)))
    A('v_mov_b32 v28, 0x3f80')
    A('ds_write_addtid_b32 v28 offset:%d' % (16 * FTS))
    for t in put(17, F(1)) + put(0, G0, True): A(t)
    g, gn = G0, G1
    for i in range(1, 16):
        seqs = [cm(gn, g, F(16)) + put(i, gn, True)]
        b = i + 2
        if b <= 15: seqs.append(cm(F(b), F(b - 2), F(2)))
        if i + 1 <= 15: seqs.append(put(16 + i + 1, F(i + 1)))
        if 2 <= i <= 7: seqs.append(cm(O(i), O(i - 1), O(1)))
        inter(*seqs)
        g, gn = gn, g
    A('s_mov_b32 m0, s66'); hi_m0[0] = True
    for t in put(32, O(1)): A(t)
    lst = [(32 + m, O(1), F(2 * m)) for m in range(1, 9)]
    lst += [(41 + n, O(2 + (n >> 2)), F(4 * ((n & 3) + 1))) for n in range(8)]
    lst += [(49 + n, O(4 + (n >> 1)), F(8 * ((n & 1) + 1))) for n in range(8)]
    for i in range(0, len(lst), 2):
        (r0, a0, b0), (r1, a1, b1) = lst[i], lst[i + 1]
        inter(cm(24, a0, b0) + put(r0, 24), cm(26, a1, b1) + put(r1, 26))
    stamp(A)
    A('s_mov_b32 s67, 0x05040100')
    A('s_mov_b32 s68, 0x07060302')
    A('v_lshlrev_b32 v5, 3, v0')
    A('v_add_u32 v5, %d, v5' % (XT + 512))
    vm.wait(A, 'x')
    for c in range(4):
        sel = 's67' if (c & 1) == 0 else 's68'
        h = c >> 1
        A('v_perm_b32 v%d, v%d, v%d, %s' % (24 + 2 * c, XG + 2 + h, XG + h, sel))
        A('v_perm_b32 v%d, v%d, v%d, %s' % (25 + 2 * c, XG + 6 + h, XG + 4 + h, sel))
        A('ds_write_b64 v5, v[%d:%d] offset:%d' % (24 + 2 * c, 25 + 2 * c, c * XTS))
    stamp(A)
    aG, aX, a80, a81, a82, a4, aW, aT = 8, 9, 10, 11, 12, 13, 14, 16
    A('v_mul_u32_u24 v%d, %d, v6' % (aG, FTS))
    A('v_and_b32 v2, 1, v7')
    A('v_lshlrev_b32 v2, 8, v2')
    A('v_lshrrev_b32 v3, 1, v7')
    A('v_lshl_add_u32 v2, v3, 7, v2')
    A('s_lshl_b32 s65, s6, 9')
    A('v_add_u32 v2, s65, v2')
    A('v_add_u32 v%d, v%d, v2' % (aG, aG))
    A('v_lshlrev_b32 v%d, 5, v6' % aX)
    A('v_lshl_add_u32 v%d, v7, 4, v%d' % (aX, aX))
    A('v_add_u32 v%d, s64, v%d' % (aX, aX))
    A('v_and_b32 v3, 1, v6')
    A('v_xor_b32 v3, 1, v3')
    A('v_mul_u32_u24 v3, %d, v3' % (KCP + 2))
    A('v_sub_u32 v4, 15, v6')
    A('v_lshl_add_u32 v3, v4, 1, v3')
    A('v_add_u32 v3, s62, v3')
    A('v_lshl_add_u32 v%d, v7, 4, v3' % a80)
    A('v_add_u32 v%d, 1024, v%d' % (a81, a80))
    A('v_add_u32 v%d, 2048, v%d' % (a82, a80))
    A('v_lshl_add_u32 v%d, v7, 3, v3' % a4)
    A('v_add_u32 v%d, 1216, v%d' % (a4, a4))
    lB, lJ = A.label('cvB'), A.label('cvJ')
    AC = 32
    def rd128(dst, ad, off): return ['ds_read_b128 v[%d:%d], v%d offset:%d' % (dst, dst + 3, ad, off)]
    def rd8(dst, dw):
        ad = a80 + dw // 256; o = dw % 256
        assert o + 3 <= 255
        return ['ds_read2_b32 v[%d:%d], v%d offset0:%d offset1:%d' % (dst, dst + 1, ad, o, o + 1),
                'ds_read2_b32 v[%d:%d], v%d offset0:%d offset1:%d' % (dst + 2, dst + 3, ad, o + 2, o + 3)]
    def rd4(dst, dw0, dw1):
        return ['ds_read2_b32 v[%d:%d], v%d offset0:%d offset1:%d' % (dst, dst + 1, a4, dw0 - 304, dw0 - 303),
                'ds_read2_b32 v[%d:%d], v%d offset0:%d offset1:%d' % (dst + 2, dst + 3, a4, dw1 - 304, dw1 - 303)]
    def mf(d, a_, b_, c_):
        return 'v_mfma_f32_16x16x32_bf16 v[%d:%d], v[%d:%d], v[%d:%d], %s' % (d, d + 3, a_, a_ + 3, b_, b_ + 3, '0' if c_ is None else v(c_, 4))
    def tabwrite(D, off):
        A('v_cvt_pk_bf16_f32 v18, v%d, v%d' % (D + 3, D + 2))
        A('v_cvt_pk_bf16_f32 v19, v%d, v%d' % (D + 1, D))
        A('v_alignbit_b32 v20, v19, v18, 16')
        A('ds_write_b64 v%d, v[18:19] offset:%d' % (aW, off))
        A('ds_write_b16 v%d, v18 offset:%d' % (aW, off + KCP + 2))
        A('ds_write_b32 v%d, v20 offset:%d' % (aW, off + KCP + 4))
        A('ds_write_b16_d16_hi v%d, v19 offset:%d' % (aW, off + KCP + 8))
    def dense(S, sigmas, touched, XR, KR, last):
        for n, sg in enumerate(sigmas):
            bank = last['n'] & 1; last['n'] += 1
            xb, kb = XR + 32 * bank, KR + 12 * bank
            prev = last.get(bank)
            Bs = [0, 1, 2] if sg == 0 else [0, 1]
            kid = {}; xid = {}
            aft = lambda r: (prev or {}).get(r)
            kid[0] = S.read(rd8(kb, 256 - 16 * sg), aft(kb))
            xid[0] = S.read(rd128(xb, aX, 480 - 64 * sg), aft(xb))
            for B in Bs[1:]:
                kid[B] = S.read(rd8(kb + 4 * B, 256 - 16 * (sg + 8 * B)), aft(kb + 4 * B))
            for tp in range(1, 8):
                xid[tp] = S.read(rd128(xb + 4 * tp, aX, 480 + 512 * tp - 64 * sg), aft(xb + 4 * tp))
            use = {}
            for tp in range(8):
                for B in Bs:
                    T = tp + B
                    if T > 7: continue
                    j = S.op(mf(AC + 4 * T, kb + 4 * B, xb + 4 * tp, AC + 4 * T if T in touched else None), (kid[B], xid[tp]))
                    touched.add(T); use[kb + 4 * B] = j; use[xb + 4 * tp] = j
            if prev:
                for r, j in prev.items(): use.setdefault(r, j)
            last[bank] = use
    A('s_cmp_lg_u32 s7, 0')
    A('s_cbranch_scc1 ' + lB)
    A('v_bfe_u32 v3, v6, 1, 1')
    A('v_add_u32 v3, v3, v6')
    A('v_lshrrev_b32 v3, 1, v3')
    A('v_mul_u32_u24 v3, %d, v3' % FTS)
    A('v_add_u32 v3, %d, v3' % (32 * FTS))
    A('v_add_u32 v%d, v3, v2' % aT)
    A('v_lshlrev_b32 v3, 5, v6')
    A('v_lshl_add_u32 v3, v7, 3, v3')
    A('s_add_u32 s65, s62, 560')
    A('v_sub_u32 v%d, s65, v3' % aW)
    A('v_cmp_eq_u32 vcc, 0, v1')
    A('v_cndmask_b32 v24, 0, v15, vcc')
    for r in (25, 26, 27): A('v_mov_b32 v%d, 0' % r)
    A('s_waitcnt lgkmcnt(0)')
    A('s_barrier')
    stamp(A); nst = STAMP['n']
    S = Stream(A, 14)
    for s_ in range(8):
        f = 64 + 12 * s_
        g_ = S.read(rd128(f, aG, 16 * s_)); f0 = S.read(rd128(f + 4, aG, 16 * FTS + 16 * s_)); f1 = S.read(rd128(f + 8, aT, 16 * s_))
        S.op(mf(24, f + 4, f, 24), (g_, f0))
        S.op(mf(28, f + 8, f, 28 if s_ else None), (g_, f1))
    S.emit()
    tabwrite(24, 8 + 512)
    tabwrite(28, 8)
    A('v_cvt_pk_bf16_f32 v18, 0, v31')
    A('v_cvt_pk_bf16_f32 v19, v31, v31')
    A('s_mov_b32 exec_lo, 0')
    A('s_mov_b32 exec_hi, 0x80000000')
    A('ds_write_b64 v%d, v[18:19]' % aW)
    A('ds_write_b32 v%d, v19 offset:%d' % (aW, KCP + 4))
    A('ds_write_b16 v%d, v19 offset:%d' % (aW, KCP + 8))
    A('s_mov_b64 exec, -1')
    A('s_waitcnt lgkmcnt(0)')
    stamp(A)
    touched = set(); last = {'n': 0}
    S = Stream(A, 12)
    dense(S, [0, 1, 2, 3], touched, 64, 128, last)
    S.op('s_barrier')
    dense(S, [4, 5], touched, 64, 128, last)
    S.emit()
    A('s_lshl_b32 s65, s5, 12')
    A('v_lshl_add_u32 v2, v1, 4, s65')
    for t in range(4): A('ds_write_b128 v2, v[%d:%d] offset:%d' % (AC + 16 + 4 * t, AC + 16 + 4 * t + 3, CRED + 1024 * t))
    A('s_branch ' + lJ)
    A(lB + ':')
    A('v_add_u32 v%d, %d, v%d' % (aT, 41 * FTS, aG))
    A('v_and_b32 v2, 3, v6')
    A('v_lshlrev_b32 v2, 6, v2')
    A('v_lshrrev_b32 v3, 2, v6')
    A('v_lshlrev_b32 v3, 4, v3')
    A('v_sub_u32 v2, v2, v3')
    A('v_add_u32 v2, 652, v2')
    A('v_and_b32 v3, 1, v6')
    A('v_mul_u32_u24 v3, 80, v3')
    A('v_lshrrev_b32 v4, 1, v6')
    A('v_lshlrev_b32 v4, 4, v4')
    A('v_sub_u32 v3, v3, v4')
    A('v_add_u32 v3, %d, v3' % (924 + 64))
    A('v_cmp_gt_u32 vcc, 8, v6')
    A('v_cndmask_b32 v2, v3, v2, vcc')
    A('v_lshlrev_b32 v3, 2, v7')
    A('v_sub_u32 v2, v2, v3')
    A('v_lshl_add_u32 v%d, v2, 1, s62' % aW)
    A('v_mov_b32 v17, s62')
    A('s_waitcnt lgkmcnt(0)')
    A('s_barrier')
    STAMP['n'] = nst - 1; stamp(A)
    WR, TB8, TB16, SPF, XZ, ZD, ZA = 64, 80, 104, 120, 124, 140, 188
    S = Stream(A, 14)
    for s_ in range(8):
        f = 140 + 8 * s_
        g_ = S.read(rd128(f, aG, 16 * s_)); f0 = S.read(rd128(f + 4, aT, 16 * s_))
        S.op(mf(24, f, f + 4, 24 if s_ else None), (g_, f0))
    S.emit()
    for w, tw in enumerate((0, 54, 104, 154)):
        for t in rd8(WR + 4 * w, 512 + tw // 2): A(t)
    tabwrite(24, 0)
    A('v_cvt_pk_bf16_f32 v19, v27, v27')
    A('s_mov_b32 exec_lo, 0')
    A('s_mov_b32 exec_hi, 0x00800000')
    A('ds_write_b16 v17, v19 offset:%d' % (2 * 587))
    A('ds_write_b16 v17, v19 offset:%d' % (2 * 588))
    A('ds_write_b32 v17, v19 offset:%d' % (KCP + 2 * 588))
    A('s_mov_b64 exec, -1')
    A('s_waitcnt lgkmcnt(0)')
    stamp(A)
    touched = set()
    S = Stream(A, 12)
    xuse = {}
    xid = {}
    def xreads(b):
        xb = XZ + 8 * (b & 1)
        xid[b] = (S.read(rd128(xb, aX, 480 + 512 * b), xuse.get(b - 2)), S.read(rd128(xb + 4, aX, 464 + 512 * b), xuse.get(b - 2)))
    def zops(b):
        xb = XZ + 8 * (b & 1); zd = ZD + 24 * (b & 1)
        cl = [(0, 0), (1, 0), (0, 1), (1, 1)] + ([(2, 0), (3, 1)] if b < 4 else [])
        for i, (w, h) in enumerate(cl):
            xuse[b] = S.op(mf(zd + 4 * i, xb + 4 * h, WR + 4 * w, None), (xid[b][h],))
        if b < 4:
            T = b + 4
            xuse[b] = S.op(mf(AC + 4 * T, SPF, xb, AC + 4 * T if T in touched else None), (spid, xid[b][0])); touched.add(T)
    def cvts(b):
        zd = ZD + 24 * (b & 1); za = ZA + 12 * (b & 1)
        n = 6 if b < 4 else 4
        return ['v_cvt_pk_bf16_f32 v%d, v%d, v%d' % (za + k, zd + 2 * k, zd + 2 * k + 1) for k in range(2 * n)]
    def cls(b):
        za = ZA + 12 * (b & 1)
        o = []
        for B in (2, 3, 4):
            for a_ in range(2):
                if b + B <= 7: o.append((b + B, za + 4 * a_, TB8 + 4 * (2 * (B - 2) + a_), t8[(B, a_)]))
        for B in (4, 5, 6, 7):
            if b + B <= 7: o.append((b + B, za + 8, TB16 + 4 * (B - 4), t16[B]))
        return o
    xreads(0)
    spid = S.read(rd8(SPF, 280))
    xreads(1)
    t8 = {}; t16 = {}
    for B in (2, 3, 4):
        for a_ in range(2):
            t8[(B, a_)] = S.read(rd4(TB8 + 4 * (2 * (B - 2) + a_), 304 + 32 * (2 * a_) + 32 - 8 * B, 304 + 32 * (2 * a_ + 1) + 32 - 8 * B))
    for B in (4, 5, 6, 7):
        t16[B] = S.read(rd4(TB16 + 4 * (B - 4), 432 + 56 - 8 * B, 432 + 40 + 56 - 8 * B))
    zops(0)
    zops(1)
    for t in cvts(0): S.op(t)
    for b in range(6):
        if b + 2 < 6: xreads(b + 2)
        cv = cvts(b + 1) if b + 1 < 6 else []
        o = cls(b)
        per = -(-len(cv) // len(o))
        for (T, a_, b_, rid) in o:
            S.op(mf(AC + 4 * T, a_, b_, AC + 4 * T if T in touched else None), (rid,)); touched.add(T)
            for _ in range(per):
                if cv: S.op(cv.pop(0))
        if b + 2 < 6: zops(b + 2)
    S.emit()
    A('s_barrier')
    S = Stream(A, 12)
    dense(S, [6, 7], touched, 64, 128, {'n': 0})
    S.emit()
    A('s_lshl_b32 s65, s5, 12')
    A('v_lshl_add_u32 v2, v1, 4, s65')
    for t in range(4): A('ds_write_b128 v2, v[%d:%d] offset:%d' % (AC + 4 * t, AC + 4 * t + 3, CRED + 1024 * t))
    for r in range(16): A('v_mov_b32 v%d, v%d' % (AC + r, AC + 16 + r))
    A(lJ + ':')
    stamp(A)
    A('v_xor_b32 v2, 0x4000, v2')
    A('v_lshlrev_b32 v3, 5, v6')
    A('v_lshl_add_u32 v3, v7, 3, v3')
    A('s_lshl_b32 s65, s4, 12')
    A('s_lshl_b32 s66, s7, 11')
    A('s_add_u32 s65, s65, s66')
    A('s_add_u32 s65, s65, 0x%x' % WS_B)
    A('s_waitcnt lgkmcnt(0)')
    A('s_barrier')
    for t in range(4): A('ds_read_b128 v[%d:%d], v2 offset:%d' % (64 + 4 * t, 67 + 4 * t, CRED + 1024 * t))
    for t in range(4):
        A('s_waitcnt lgkmcnt(%d)' % (3 - t))
        for r in range(4): A('v_add_f32 v%d, v%d, v%d' % (64 + 4 * t + r, 64 + 4 * t + r, AC + 4 * t + r))
        A('v_cvt_pk_bf16_f32 v%d, v%d, v%d' % (64 + 4 * t, 64 + 4 * t, 65 + 4 * t))
        A('v_cvt_pk_bf16_f32 v%d, v%d, v%d' % (65 + 4 * t, 66 + 4 * t, 67 + 4 * t))
        A('buffer_store_dwordx2 v[%d:%d], v3, s[56:59], s65 offen offset:%d%s' % (64 + 4 * t, 65 + 4 * t, 512 * t, ST))
    stamp(A)
    stamp_end(A, 0)
```

```python
from asmlib import *
import math
LOG2E = 1.4426950408889634
INV2PI = 1.0 / (2 * math.pi)

WS_H = 0
WS_E = 4 << 20
WS_G = WS_E + 65536
WS_C = 5 << 20
WS_B = 6 << 20
WS_END = 8 << 20

P = {n: 8 + 2 * i for i, n in enumerate(
    "x Lre Lim Bre Bim Cre Cim Aldt ADs Bu BAre BAim BBre BBim BCre BCim Bldt BDs gw out dbg ws".split())}

class VM:
    def __init__(self): self.q = []
    def issue(self, tag, n=1): self.q += [tag] * n
    def wait(self, A, tag, extra=''):
        idx = max(i for i, t in enumerate(self.q) if t == tag)
        n = len(self.q) - 1 - idx
        assert n <= 63
        A('s_waitcnt vmcnt(%d)%s' % (n, extra))

def load_kernargs(A):
    A('s_load_dwordx16 s[8:23], s[0:1], 0')
    A('s_load_dwordx16 s[24:39], s[0:1], 64')
    A('s_load_dwordx8 s[40:47], s[0:1], 128')
    A('s_load_dwordx4 s[48:51], s[0:1], 160')

def srd(A, d, base, nbytes):
    A('s_mov_b32 s%d, s%d' % (d, base))
    A('s_mov_b32 s%d, s%d' % (d + 1, base + 1))
    A('s_mov_b32 s%d, 0x%x' % (d + 2, nbytes))
    A('s_mov_b32 s%d, 0x00020000' % (d + 3))

def cexp(A, dre, dim, are, aim, k, t0, t1):
    if k == 1.0:
        A('v_exp_f32 v%d, v%d' % (t0, are))
        A('v_fract_f32 v%d, v%d' % (t1, aim))
    else:
        A('v_mul_f32 v%d, %s, v%d' % (t0, f2u(k), are))
        A('v_mul_f32 v%d, %s, v%d' % (t1, f2u(k), aim))
        A('v_exp_f32 v%d, v%d' % (t0, t0))
        A('v_fract_f32 v%d, v%d' % (t1, t1))
    A('v_cos_f32 v%d, v%d' % (dre, t1))
    A('v_sin_f32 v%d, v%d' % (dim, t1))
    A('v_mul_f32 v%d, v%d, v%d' % (dre, dre, t0))
    A('v_mul_f32 v%d, v%d, v%d' % (dim, dim, t0))

STAMP = {'on': False, 'n': 0}
WS_ST = 16 << 20
def stamp(A, real=False):
    if not STAMP['on']: return
    i = STAMP['n']; STAMP['n'] += 1
    assert i < 11
    A('%s s[%d:%d]' % ('s_memrealtime' if real else 's_memtime', 80 + 2 * i, 81 + 2 * i))
    A('s_waitcnt lgkmcnt(0)')
def stamp_begin(A):
    STAMP['n'] = 0
    stamp(A, True); stamp(A)
def stamp_end(A, kern):
    if not STAMP['on']: return
    A('s_waitcnt vmcnt(0)')
    stamp(A); stamp(A, True)
    A('s_mov_b64 exec, -1')
    A('v_mov_b32 v250, 0')
    for i in range(STAMP['n']): A('v_writelane_b32 v250, s%d, %d' % (80 + 2 * i, i))
    A('v_writelane_b32 v250, %d, 15' % STAMP['n'])
    srd(A, 76, P['ws'], 32 << 20)
    A('s_lshl_b32 s80, s2, 3')
    A('s_add_u32 s80, s80, s5')
    A('s_lshl_b32 s80, s80, 6')
    A('s_add_u32 s80, s80, 0x%x' % (WS_ST + kern * 256 * 8 * 64))
    A('v_mbcnt_lo_u32_b32 v251, -1, 0')
    A('v_lshlrev_b32 v251, 2, v251')
    A('s_mov_b64 exec, 0xffff')
    A('buffer_store_dword v250, v251, s[76:79], s80 offen')

XCH = 131072
G1_LDS = XCH + 15 * 512

def gen_g1(A, ST=''):
    vm = VM()
    A('v_and_b32 v1, 63, v0')
    A('v_lshrrev_b32 v2, 6, v0')
    A('v_readfirstlane_b32 s5, v2')
    A('v_lshrrev_b32 v6, 5, v1')
    A('v_bfe_u32 v7, v1, 3, 2')
    A('v_lshl_add_u32 v7, v6, 4, v7')
    A('v_lshlrev_b32 v7, 10, v7')
    A('v_lshrrev_b32 v8, 4, v1')
    A('v_and_b32 v9, 7, v1')
    A('v_xor_b32 v8, v8, v9')
    A('v_lshl_or_b32 v2, v8, 4, v7')
    A('v_xor_b32 v3, 64, v2')
    A('v_add_u32 v3, 0x1000, v3')
    A('v_add_u32 v4, 0x2000, v2')
    A('v_add_u32 v5, 0x2000, v3')
    A('s_and_b32 s6, s5, 3')
    A('s_lshr_b32 s7, s5, 2')
    A('s_lshl_b32 s60, s4, 7')
    A('v_lshl_add_u32 v10, v1, 1, s60')
    A('v_lshrrev_b32 v11, 4, v0')
    A('v_and_b32 v12, 15, v0')
    A('s_lshl_b32 s61, s3, 15')
    A('s_add_u32 s61, s61, s60')
    A('v_lshlrev_b32 v13, 10, v11')
    A('v_lshl_add_u32 v13, v12, 3, v13')
    A('v_add_u32 v13, s61, v13')
    A('s_lshl_b32 s62, s3, 7')
    A('s_lshl_b32 s63, s4, 4')
    A('s_add_u32 s62, s62, s63')
    A('s_lshl_b32 s63, s5, 1')
    A('s_add_u32 s62, s62, s63')
    A('s_lshl_b32 s63, s62, 10')
    A('v_lshlrev_b32 v14, 4, v1')
    A('v_add_u32 v15, s63, v14')
    A('s_waitcnt lgkmcnt(0)')
    A('global_load_ushort v20, v10, s[%d:%d]' % (P['Lre'], P['Lre'] + 1))
    A('global_load_ushort v21, v10, s[%d:%d]' % (P['Lim'], P['Lim'] + 1))
    A('global_load_ushort v22, v10, s[%d:%d]' % (P['Aldt'], P['Aldt'] + 1))
    vm.issue('par', 3)
    A('global_load_dwordx2 v[24:25], v13, s[%d:%d]' % (P['Cre'], P['Cre'] + 1))
    A('global_load_dwordx2 v[26:27], v13, s[%d:%d]' % (P['Cim'], P['Cim'] + 1))
    vm.issue('C', 2)
    A('global_load_dwordx4 v[28:31], v14, s[%d:%d]' % (P['gw'], P['gw'] + 1))
    A('global_load_dwordx4 v[32:35], v15, s[%d:%d]' % (P['x'], P['x'] + 1))
    A('global_load_dwordx4 v[36:39], v15, s[%d:%d] offset:1024' % (P['x'], P['x'] + 1))
    vm.issue('gate', 3)
    A('s_bitcmp1_b32 s5, 0')
    A('s_cselect_b64 s[52:53], s[%d:%d], s[%d:%d]' % (P['Bim'], P['Bim'] + 1, P['Bre'], P['Bre'] + 1))
    A('s_lshl_b32 s64, s4, 6')
    A('s_lshr_b32 s65, s6, 1')
    A('s_lshl_b32 s65, s65, 5')
    A('s_add_u32 s64, s64, s65')
    A('s_lshl_b32 s65, s3, 7')
    A('s_lshl_b32 s66, s6, 5')
    A('s_add_u32 s65, s65, s66')
    A('s_mov_b32 s54, 0x80000')
    A('s_cmp_eq_u32 s7, 0')
    A('s_cselect_b64 s[52:53], s[%d:%d], s[52:53]' % (P['x'], P['x'] + 1))
    A('s_cselect_b32 s54, 0x200000, s54')
    A('s_cselect_b32 s64, s65, s64')
    A('s_mov_b32 s55, 0x00020000')
    A('s_lshl_b32 s64, s64, 10')
    A('s_lshl_b32 s66, s5, 12')
    srd(A, 56, P['ws'], WS_END)
    def dma(kc):
        buf = kc & 3
        A('s_add_u32 s65, s64, %d' % (kc * 128))
        for i in range(4):
            A('s_add_u32 m0, s66, %d' % (buf * 32768 + i * 1024))
            A('buffer_load_dwordx4 v%d, s[52:55], s65 offen lds' % (2 + i))
        vm.issue('d%d' % kc, 4)
    for kc in range(4): dma(kc)
    A('v_mov_b32 v16, 0')
    A('v_mov_b32 v17, 0')
    A('v_lshlrev_b32 v18, 3, v0')
    A('v_add_u32 v18, 0x%x, v18' % XCH)
    A('ds_write_b64 v18, v[16:17]')
    A('v_and_b32 v16, 31, v1')
    A('v_bfe_u32 v17, v1, 1, 3')
    A('v_xor_b32 v17, v17, v6')
    A('v_lshlrev_b32 v16, 7, v16')
    A('v_lshl_or_b32 v16, v17, 4, v16')
    A('s_lshl_b32 s67, s6, 12')
    A('s_lshl_b32 s68, s7, 13')
    A('s_add_u32 s68, s68, 0x4000')
    for ks in range(4):
        A('v_xor_b32 v17, %d, v16' % (ks * 32))
        A('v_add_u32 v%d, s67, v17' % (40 + ks))
        A('v_add_u32 v%d, s68, v17' % (44 + ks))
    stamp(A)
    vm.wait(A, 'par')
    A('v_lshlrev_b32 v20, 16, v20')
    A('v_lshlrev_b32 v21, 16, v21')
    A('v_lshlrev_b32 v22, 16, v22')
    A('v_mul_f32 v22, %s, v22' % f2u(LOG2E))
    A('v_exp_f32 v22, v22')
    A('v_cvt_pk_bf16_f32 v22, v22, v22')
    A('v_lshlrev_b32 v22, 16, v22')
    A('v_mul_f32 v48, v22, v20')
    A('v_mul_f32 v49, v22, v21')
    A('v_mul_f32 v48, %s, v48' % f2u(LOG2E))
    A('v_mul_f32 v49, %s, v49' % f2u(INV2PI))
    A('v_bfe_u32 v16, v1, 2, 1')
    A('v_bfe_u32 v17, v1, 3, 2')
    A('v_and_b32 v18, 3, v1')
    A('v_lshl_add_u32 v18, v16, 4, v18')
    A('v_lshl_add_u32 v18, v17, 2, v18')
    A('s_lshl_b32 s69, s7, 5')
    A('v_add_u32 v19, s69, v18')
    A('v_lshlrev_b32 v18, 2, v19')
    A('ds_bpermute_b32 v50, v18, v48')
    A('ds_bpermute_b32 v51, v18, v49')
    cexp(A, 52, 53, 48, 49, 1.0, 16, 17)
    A('v_add_f32 v52, -1.0, v52')
    A('v_mul_f32 v16, v20, v20')
    A('v_fmac_f32 v16, v21, v21')
    A('v_rcp_f32 v16, v16')
    A('v_mul_f32 v17, v52, v20')
    A('v_fmac_f32 v17, v53, v21')
    A('v_mul_f32 v18, v53, v20')
    A('v_fma_f32 v18, -v52, v21, v18')
    A('v_add_f32 v16, v16, v16')
    A('v_mul_f32 v52, v17, v16')
    A('v_mul_f32 v53, v18, v16')
    A('v_lshlrev_b32 v16, 4, v12')
    for e in range(4):
        A('ds_bpermute_b32 v%d, v16, v52 offset:%d' % (54 + e, 4 * e))
        A('ds_bpermute_b32 v%d, v16, v53 offset:%d' % (58 + e, 4 * e))
    vm.wait(A, 'gate')
    A('v_mov_b32 v62, 0')
    A('v_mov_b32 v63, 0')
    for e in range(4):
        A('v_dot2c_f32_bf16 v62, v%d, v%d' % (32 + e, 28 + e))
        A('v_dot2c_f32_bf16 v63, v%d, v%d' % (36 + e, 28 + e))
    for sh in (1, 2, 4, 8):
        A('v_add_f32_dpp v62, v62, v62 row_shr:%d row_mask:0xf bank_mask:0xf bound_ctrl:0' % sh)
        A('v_add_f32_dpp v63, v63, v63 row_shr:%d row_mask:0xf bank_mask:0xf bound_ctrl:0' % sh)
    A('v_add_f32_dpp v62, v62, v62 row_bcast:15 row_mask:0xa bank_mask:0xf')
    A('v_add_f32_dpp v63, v63, v63 row_bcast:15 row_mask:0xa bank_mask:0xf')
    A('v_add_f32_dpp v62, v62, v62 row_bcast:31 row_mask:0xc bank_mask:0xf')
    A('v_add_f32_dpp v63, v63, v63 row_bcast:31 row_mask:0xc bank_mask:0xf')
    A('v_cvt_pk_bf16_f32 v62, v62, v63')
    A('v_and_b32 v63, 0xffff0000, v62')
    A('v_lshlrev_b32 v62, 16, v62')
    for r in (62, 63):
        A('v_mul_f32 v%d, %s, v%d' % (r, f2u(-LOG2E), r))
    for r in (62, 63):
        A('v_exp_f32 v%d, v%d' % (r, r))
    for r in (62, 63):
        A('v_add_f32 v%d, 1.0, v%d' % (r, r))
    for r in (62, 63):
        A('v_rcp_f32 v%d, v%d' % (r, r))
    A('v_cvt_pk_bf16_f32 v62, v62, v63')
    A('v_and_b32 v63, 0xffff0000, v62')
    A('v_lshlrev_b32 v62, 16, v62')
    A('v_sub_f32 v28, 1.0, v62')
    A('v_sub_f32 v29, 1.0, v63')
    A('v_cvt_pk_bf16_f32 v62, v62, v28')
    A('v_cvt_pk_bf16_f32 v63, v63, v29')
    A('s_lshl_b32 s63, s62, 2')
    A('s_add_u32 s63, s63, 0x%x' % WS_G)
    A('v_mov_b32 v28, 0')
    A('s_mov_b64 s[70:71], exec')
    A('s_mov_b32 exec_lo, 0')
    A('s_mov_b32 exec_hi, 0x80000000')
    A('buffer_store_dwordx2 v[62:63], v28, s[56:59], s63 offen' + ST)
    vm.issue('st')
    A('s_mov_b64 exec, s[70:71]')
    A('s_waitcnt lgkmcnt(0)')
    for e in range(4):
        cr, ci = 32, 33
        if e & 1:
            A('v_and_b32 v32, 0xffff0000, v%d' % (24 + e // 2))
            A('v_and_b32 v33, 0xffff0000, v%d' % (26 + e // 2))
        else:
            A('v_lshlrev_b32 v32, 16, v%d' % (24 + e // 2))
            A('v_lshlrev_b32 v33, 16, v%d' % (26 + e // 2))
        A('v_mul_f32 v%d, v%d, v32' % (34 + e, 54 + e))
        A('v_mul_f32 v%d, v%d, v33' % (54 + e, 54 + e))
        A('v_fma_f32 v%d, -v%d, v33, v%d' % (34 + e, 58 + e, 34 + e))
        A('v_fma_f32 v%d, -v%d, v32, -v%d' % (54 + e, 58 + e, 54 + e))
    A('v_cvt_pk_bf16_f32 v24, v34, v35')
    A('v_cvt_pk_bf16_f32 v25, v36, v37')
    A('v_cvt_pk_bf16_f32 v26, v54, v55')
    A('v_cvt_pk_bf16_f32 v27, v56, v57')
    A('v_lshrrev_b32 v32, 8, v0')
    A('v_lshlrev_b32 v32, 15, v32')
    A('v_bfe_u32 v33, v0, 3, 1')
    A('v_lshl_or_b32 v32, v33, 10, v32')
    A('v_bfe_u32 v33, v0, 4, 4')
    A('v_lshl_or_b32 v32, v33, 4, v32')
    A('v_and_b32 v33, 3, v0')
    A('v_lshl_or_b32 v32, v33, 8, v32')
    A('v_bfe_u32 v33, v0, 2, 1')
    A('v_lshl_or_b32 v32, v33, 3, v32')
    A('s_lshl_b32 s63, s3, 16')
    A('s_lshl_b32 s69, s4, 11')
    A('s_add_u32 s63, s63, s69')
    A('s_add_u32 s63, s63, 0x%x' % WS_C)
    A('s_add_u32 s69, s63, 0x4000')
    A('buffer_store_dwordx2 v[24:25], v32, s[56:59], s63 offen' + ST)
    A('buffer_store_dwordx2 v[26:27], v32, s[56:59], s69 offen' + ST)
    vm.issue('st', 2)
    cexp(A, 52, 53, 50, 51, 1.0, 16, 17)
    cexp(A, 54, 55, 50, 51, 16.0, 16, 17)
    stamp(A)
    ACR, ACI, FR = 64, 80, 96
    for kc in range(8):
        buf = kc & 3
        vm.wait(A, 'd%d' % kc)
        A('s_barrier')
        if kc in (0, 4): stamp(A)
        if 1 <= kc <= 4: dma(kc + 3)
        if kc in (2, 4, 6):
            for r in range(40, 48): A('v_xor_b32 v%d, 0x10000, v%d' % (r, r))
        off = (buf & 1) * 32768
        for ks in range(4):
            f = FR + ks * 12
            A('ds_read_b128 v[%d:%d], v%d offset:%d' % (f, f + 3, 40 + ks, off))
            A('ds_read_b128 v[%d:%d], v%d offset:%d' % (f + 4, f + 7, 44 + ks, off))
            A('ds_read_b128 v[%d:%d], v%d offset:%d' % (f + 8, f + 11, 44 + ks, off + 4096))
        for ks in range(4):
            f = FR + ks * 12
            first = (kc == 0 and ks == 0)
            A('s_waitcnt lgkmcnt(%d)' % (10 - 3 * ks))
            A('v_mfma_f32_32x32x16_bf16 v[%d:%d], v[%d:%d], v[%d:%d], %s' % (ACR, ACR + 15, f, f + 3, f + 4, f + 7, '0' if first else v(ACR, 16)))
            A('s_waitcnt lgkmcnt(%d)' % (9 - 3 * ks))
            A('v_mfma_f32_32x32x16_bf16 v[%d:%d], v[%d:%d], v[%d:%d], %s' % (ACI, ACI + 15, f, f + 3, f + 8, f + 11, '0' if first else v(ACI, 16)))
    stamp(A)
    A('v_and_b32 v16, 31, v1')
    A('v_lshlrev_b32 v16, 3, v16')
    A('v_lshl_add_u32 v16, v6, 9, v16')
    A('s_lshl_b32 s63, s6, 10')
    A('s_lshl_b32 s69, s7, 8')
    A('s_add_u32 s63, s63, s69')
    A('s_add_u32 s63, s63, 0x%x' % XCH)
    A('v_add_u32 v18, s63, v16')
    LR, LI, QR, QI = 52, 53, 54, 55
    er, ei, tr, ti = ACR, ACI, 20, 21
    for j in range(1, 16):
        nr, ni = (20, 21) if (j & 1) else (22, 23)
        A('v_fma_f32 v%d, v%d, v%d, v%d' % (nr, LR, er, ACR + j))
        A('v_fma_f32 v%d, v%d, v%d, v%d' % (ni, LR, ei, ACI + j))
        A('v_fma_f32 v%d, -v%d, v%d, v%d' % (nr, LI, ei, nr))
        A('v_fma_f32 v%d, v%d, v%d, v%d' % (ni, LI, er, ni))
        er, ei = nr, ni
    assert (er, ei) == (20, 21)
    A('ds_write_b64 v18, v[20:21] offset:%d' % (7 * 512))
    A('s_waitcnt lgkmcnt(0)')
    A('s_barrier')
    for m in range(7):
        A('ds_read_b64 v[%d:%d], v18 offset:%d' % (24 + 2 * m, 25 + 2 * m, m * 512))
    A('s_lshl_b32 s63, s4, 6')
    A('v_add_u32 v19, s63, v19')
    A('v_lshlrev_b32 v17, 4, v19')
    A('v_lshl_add_u32 v17, v6, 14, v17')
    A('s_lshl_b32 s63, s3, 18')
    A('s_lshr_b32 s69, s6, 1')
    A('s_lshl_b32 s69, s69, 17')
    A('s_add_u32 s63, s63, s69')
    A('s_and_b32 s69, s6, 1')
    A('s_lshl_b32 s69, s69, 15')
    A('s_add_u32 s72, s63, s69')
    A('s_add_u32 s73, s72, 0x2000')
    A('s_add_u32 s74, s72, 0x10000')
    A('s_add_u32 s75, s72, 0x12000')
    for m in range(1, 7):
        A('s_waitcnt lgkmcnt(%d)' % (6 - m))
        pr, pi, cr, ci = 22 + 2 * m, 23 + 2 * m, 24 + 2 * m, 25 + 2 * m
        A('v_fmac_f32 v%d, v%d, v%d' % (cr, QR, pr))
        A('v_fmac_f32 v%d, v%d, v%d' % (ci, QR, pi))
        A('v_fma_f32 v%d, -v%d, v%d, v%d' % (cr, QI, pi, cr))
        A('v_fmac_f32 v%d, v%d, v%d' % (ci, QI, pr))
    pr, pi = 36, 37
    for j in range(16):
        cr, ci = ACR + j, ACI + j
        A('v_fmac_f32 v%d, v%d, v%d' % (cr, LR, pr))
        A('v_fmac_f32 v%d, v%d, v%d' % (ci, LR, pi))
        A('v_fma_f32 v%d, -v%d, v%d, v%d' % (cr, LI, pi, cr))
        A('v_fmac_f32 v%d, v%d, v%d' % (ci, LI, pr))
        pr, pi = cr, ci
        if j & 1:
            A('v_cvt_pk_bf16_f32 v%d, v%d, v%d' % (96 + j // 2, ACR + j - 1, ACR + j))
            A('v_cvt_pk_bf16_f32 v%d, v%d, v%d' % (104 + j // 2, ACI + j - 1, ACI + j))
        if j == 7:
            A('buffer_store_dwordx4 v[96:99], v17, s[56:59], s72 offen' + ST)
            A('buffer_store_dwordx4 v[104:107], v17, s[56:59], s74 offen' + ST)
    A('buffer_store_dwordx4 v[100:103], v17, s[56:59], s73 offen' + ST)
    A('buffer_store_dwordx4 v[108:111], v17, s[56:59], s75 offen' + ST)
    l = A.label('noE')
    A('s_cmp_lg_u32 s6, 3')
    A('s_cbranch_scc1 ' + l)
    A('v_cvt_pk_bf16_f32 v20, v%d, v%d' % (ACR + 15, ACI + 15))
    A('v_lshlrev_b32 v17, 4, v19')
    A('s_lshr_b32 s63, s3, 2')
    A('s_lshl_b32 s63, s63, 13')
    A('s_and_b32 s69, s3, 3')
    A('s_lshl_b32 s69, s69, 2')
    A('s_add_u32 s63, s63, s69')
    A('s_add_u32 s63, s63, 0x%x' % WS_E)
    A('s_mov_b32 exec_lo, 0')
    A('buffer_store_dword v20, v17, s[56:59], s63 offen' + ST)
    A(l + ':')
    stamp(A)
    stamp_end(A, 0)
    A('s_endpgm')
```

```python
from asmlib import *
from g1 import *

RED = 131072
G2_LDS = RED + 16384

def gen_g2(A, opts):
    NH0, NH1, NH2 = [int(c) for c in opts.get('nh', '234')]
    vm = VM()
    end = A.label('end2')
    load_kernargs(A)
    A('s_cmp_ge_u32 s2, 256')
    A('s_cbranch_scc1 ' + end)
    stamp_begin(A)
    A('s_and_b32 s3, s2, 7')
    A('s_lshl_b32 s3, s3, 2')
    A('s_lshr_b32 s4, s2, 6')
    A('s_add_u32 s3, s3, s4')
    A('s_bfe_u32 s4, s2, 0x30003')
    A('s_lshr_b32 s6, s3, 1')
    A('v_and_b32 v1, 63, v0')
    A('v_lshrrev_b32 v2, 6, v0')
    A('v_readfirstlane_b32 s5, v2')
    A('v_lshlrev_b32 v2, 1, v0')
    A('v_lshlrev_b32 v3, 4, v0')
    A('v_lshlrev_b32 v4, 4, v1')
    A('s_lshl_b32 s60, s3, 17')
    A('s_and_b32 s7, s5, 3')
    A('s_lshr_b32 s61, s5, 2')
    A('s_lshl_b32 s62, s4, 2')
    A('s_add_u32 s62, s62, s7')
    A('s_lshl_b32 s63, s62, 15')
    A('s_lshl_b32 s64, s61, 14')
    A('s_add_u32 s63, s63, s64')
    A('s_add_u32 s63, s63, 0x%x' % WS_C)
    A('s_waitcnt lgkmcnt(0)')
    srd(A, 52, P['ws'], WS_END)
    A('global_load_ushort v8, v2, s[%d:%d]' % (P['Lre'], P['Lre'] + 1))
    A('global_load_ushort v9, v2, s[%d:%d]' % (P['Lim'], P['Lim'] + 1))
    A('global_load_ushort v10, v2, s[%d:%d]' % (P['Aldt'], P['Aldt'] + 1))
    vm.issue('par', 3)
    EB = 12
    l = A.label('noE')
    for q in range(4):
        A('s_cmp_le_u32 s6, %d' % (4 * q))
        A('s_cbranch_scc1 ' + l)
        A('s_mov_b32 s64, 0x%x' % (WS_E + q * 8192))
        A('buffer_load_dwordx4 v[%d:%d], v3, s[52:55], s64 offen' % (EB + 4 * q, EB + 4 * q + 3))
    A(l + ':')
    vm.issue('E')
    HB = 64
    CB = 128
    XF, BF, GF, DS = 192, 200, 204, 212
    def ldH(o):
        A('s_add_u32 s64, s60, %d' % (o * 8192))
        A('s_add_u32 s65, s60, %d' % (o * 8192 + 65536))
        A('buffer_load_dwordx4 v[%d:%d], v3, s[52:55], s64 offen' % (HB + 8 * o, HB + 8 * o + 3))
        A('buffer_load_dwordx4 v[%d:%d], v3, s[52:55], s65 offen' % (HB + 8 * o + 4, HB + 8 * o + 7))
        vm.issue('H%d' % o, 2)
    def ldC(s_):
        if s_ % 4 == 0 and s_: A('s_add_u32 s63, s63, 4096')
        A('buffer_load_dwordx4 v[%d:%d], v4, s[52:55], s63 offen offset:%d' % (CB + 4 * s_, CB + 4 * s_ + 3, (s_ % 4) * 1024))
        vm.issue('C%d' % s_)
    def ldEpi(i):
        if i == 0:
            A('global_load_dwordx4 v[%d:%d], v220, s[%d:%d]' % (XF, XF + 3, P['x'], P['x'] + 1))
            A('global_load_dwordx4 v[%d:%d], v221, s[%d:%d]' % (XF + 4, XF + 7, P['x'], P['x'] + 1))
            vm.issue('epi', 2)
        elif i == 1:
            A('buffer_load_dwordx4 v[%d:%d], v222, s[52:55], s73 offen' % (BF, BF + 3))
            A('global_load_ushort v%d, v224, s[%d:%d]' % (DS, P['ADs'], P['ADs'] + 1))
            vm.issue('epi', 2)
        else:
            A('buffer_load_dword v%d, v223, s[52:55], s74 offen' % GF)
            A('buffer_load_dword v%d, v223, s[52:55], s74 offen offset:64' % (GF + 1))
            vm.issue('epi', 2)
    for o in range(NH0): ldH(o)
    A('v_and_b32 v5, 15, v1')
    A('v_lshrrev_b32 v6, 4, v1')
    A('s_lshl_b32 s66, s3, 6')
    A('s_lshl_b32 s67, s61, 5')
    A('s_add_u32 s66, s66, s67')
    A('s_lshl_b32 s67, s62, 4')
    A('s_lshl_b32 s68, s66, 10')
    A('s_and_b32 s69, s67, 0x1e0')
    A('s_lshl_b32 s69, s69, 1')
    A('s_add_u32 s68, s68, s69')
    A('v_lshlrev_b32 v7, 10, v5')
    A('v_lshl_add_u32 v7, v6, 4, v7')
    A('v_add_u32 v220, s68, v7')
    A('v_add_u32 v221, 0x4000, v220')
    A('s_lshl_b32 s68, s67, 12')
    A('s_lshl_b32 s69, s66, 1')
    A('s_add_u32 s68, s68, s69')
    A('s_add_u32 s73, s68, 0x%x' % WS_B)
    A('v_lshlrev_b32 v7, 12, v5')
    A('v_lshl_add_u32 v222, v6, 4, v7')
    A('s_lshl_b32 s68, s66, 2')
    A('s_add_u32 s74, s68, 0x%x' % WS_G)
    A('v_lshlrev_b32 v223, 2, v5')
    A('v_add_u32 v7, s67, v5')
    A('v_lshlrev_b32 v224, 1, v7')
    srd(A, 56, P['out'], 4194304)
    A('v_lshlrev_b32 v213, 11, v5')
    A('v_lshl_add_u32 v213, v6, 4, v213')
    A('s_lshl_b32 s70, s66, 11')
    A('s_lshl_b32 s71, s67, 2')
    A('s_add_u32 s70, s70, s71')
    A('v_and_b32 v7, 7, v0')
    A('v_lshlrev_b32 v28, 7, v0')
    A('v_lshl_or_b32 v28, v7, 4, v28')
    A('v_lshrrev_b32 v7, 2, v1')
    A('v_and_b32 v11, 7, v7')
    A('v_bfe_u32 v29, v1, 1, 1')
    A('v_xor_b32 v11, v11, v29')
    A('v_lshlrev_b32 v7, 7, v7')
    A('v_lshl_or_b32 v7, v11, 4, v7')
    A('v_and_b32 v11, 1, v1')
    A('v_lshl_or_b32 v7, v11, 3, v7')
    A('s_lshl_b32 s64, s61, 16')
    A('v_add_u32 v7, s64, v7')
    for t in range(4):
        A('v_xor_b32 v%d, %d, v7' % (214 + t, 32 * t))
    stamp(A)
    vm.wait(A, 'E')
    A('v_lshlrev_b32 v8, 16, v8')
    A('v_lshlrev_b32 v9, 16, v9')
    A('v_lshlrev_b32 v10, 16, v10')
    A('v_mul_f32 v10, %s, v10' % f2u(LOG2E))
    A('v_exp_f32 v10, v10')
    A('v_cvt_pk_bf16_f32 v10, v10, v10')
    A('v_lshlrev_b32 v10, 16, v10')
    A('v_mul_f32 v8, v10, v8')
    A('v_mul_f32 v9, v10, v9')
    A('v_mul_f32 v8, %s, v8' % f2u(LOG2E))
    A('v_mul_f32 v9, %s, v9' % f2u(INV2PI))
    PW = 32
    cexp(A, 48, 49, 8, 9, 128.0, 2, 7)
    cexp(A, PW, PW + 1, 8, 9, 1.0, 2, 7)
    for o in range(NH0, NH1): ldH(o)
    A('v_mov_b32 v50, 0')
    A('v_mov_b32 v51, 0')
    l = A.label('Sdone')
    for c in range(15):
        A('s_cmp_le_u32 s6, %d' % c)
        A('s_cbranch_scc1 ' + l)
        A('v_lshlrev_b32 v2, 16, v%d' % (EB + c))
        A('v_and_b32 v7, 0xffff0000, v%d' % (EB + c))
        A('v_fmac_f32 v2, v48, v50')
        A('v_fmac_f32 v7, v48, v51')
        A('v_fma_f32 v2, -v49, v51, v2')
        A('v_fma_f32 v51, v49, v50, v7')
        A('v_mov_b32 v50, v2')
    A(l + ':')
    def cmul(dr, di, ar, ai, br, bi):
        A('v_mul_f32 v%d, v%d, v%d' % (dr, ar, br))
        A('v_mul_f32 v%d, v%d, v%d' % (di, ar, bi))
        A('v_fma_f32 v%d, -v%d, v%d, v%d' % (dr, ai, bi, dr))
        A('v_fmac_f32 v%d, v%d, v%d' % (di, ai, br))
    for o in range(NH1, NH2): ldH(o)
    pw = lambda e: (PW + 2 * (e - 1), PW + 2 * (e - 1) + 1)
    cmul(*pw(2), *pw(1), *pw(1))
    cmul(*pw(3), *pw(2), *pw(1))
    cmul(*pw(4), *pw(2), *pw(2))
    for e in range(5, 9): cmul(*pw(e), *pw(4), *pw(e - 4))
    l = A.label('even')
    A('s_bitcmp0_b32 s3, 0')
    A('s_cbranch_scc1 ' + l)
    cexp(A, 48, 49, 8, 9, 64.0, 2, 7)
    cmul(52, 53, 48, 49, 50, 51)
    A('v_mov_b32 v50, v52')
    A('v_mov_b32 v51, v53')
    A(l + ':')
    stamp(A)
    zr, zi = 50, 51
    rest = []
    for o in range(NH2, 8): rest += [lambda o=o: ldH(o), lambda: None]
    rest += [lambda s_=s_: ldC(s_) for s_ in range(16)] + [lambda i=i: ldEpi(i) for i in range(3)]
    for o in range(8):
        vm.wait(A, 'H%d' % o)
        for _ in range(2 if o < 6 else 3):
            if rest: rest.pop(0)()
        hr, hi = HB + 8 * o, HB + 8 * o + 4
        for q in range(4):
            T = 54 + 4 * (q & 1)
            A('v_lshlrev_b32 v%d, 16, v%d' % (T, hr + q))
            A('v_and_b32 v%d, 0xffff0000, v%d' % (T + 1, hr + q))
            A('v_lshlrev_b32 v%d, 16, v%d' % (T + 2, hi + q))
            A('v_and_b32 v%d, 0xffff0000, v%d' % (T + 3, hi + q))
            for u in range(2):
                pr, pi = pw(2 * q + u + 1)
                A('v_fmac_f32 v%d, v%d, v%d' % (T + u, pr, zr))
                A('v_fmac_f32 v%d, v%d, v%d' % (T + 2 + u, pr, zi))
            for u in range(2):
                pr, pi = pw(2 * q + u + 1)
                A('v_fma_f32 v%d, -v%d, v%d, v%d' % (T + u, pi, zi, T + u))
                A('v_fmac_f32 v%d, v%d, v%d' % (T + 2 + u, pi, zr))
            A('v_cvt_pk_bf16_f32 v%d, v%d, v%d' % (hr + q, T, T + 1))
            A('v_cvt_pk_bf16_f32 v%d, v%d, v%d' % (hi + q, T + 2, T + 3))
        A('v_xor_b32 v2, %d, v28' % (16 * o))
        A('v_add_u32 v7, 0x10000, v2')
        A('ds_write_b128 v2, v[%d:%d]' % (hr, hr + 3))
        A('ds_write_b128 v7, v[%d:%d]' % (hi, hi + 3))
        if o < 7:
            nr, ni = (52, 53) if zr == 50 else (50, 51)
            cmul(nr, ni, *pw(8), zr, zi)
            zr, zi = nr, ni
    stamp(A)
    for _ in range(3): rest.pop(0)()
    A('s_waitcnt lgkmcnt(0)')
    A('s_barrier')
    stamp(A)
    AC = 32
    FR = 64
    def reads(s_):
        f = FR + (s_ & 1) * 16
        for t in range(4):
            A('ds_read_b64_tr_b16 v[%d:%d], v%d offset:%d' % (f + 4 * t, f + 4 * t + 1, 214 + t, s_ * 4096))
            A('ds_read_b64_tr_b16 v[%d:%d], v%d offset:%d' % (f + 4 * t + 2, f + 4 * t + 3, 214 + t, s_ * 4096 + 2048))
    reads(0)
    for s_ in range(16):
        f = FR + (s_ & 1) * 16
        if rest: rest.pop(0)()
        vm.wait(A, 'C%d' % s_)
        for t in range(4):
            if s_ < 15:
                f2 = FR + ((s_ + 1) & 1) * 16
                A('ds_read_b64_tr_b16 v[%d:%d], v%d offset:%d' % (f2 + 4 * t, f2 + 4 * t + 1, 214 + t, (s_ + 1) * 4096))
                A('ds_read_b64_tr_b16 v[%d:%d], v%d offset:%d' % (f2 + 4 * t + 2, f2 + 4 * t + 3, 214 + t, (s_ + 1) * 4096 + 2048))
                A('s_waitcnt lgkmcnt(8)')
            else:
                A('s_waitcnt lgkmcnt(%d)' % (6 - 2 * t))
            A('v_mfma_f32_16x16x32_bf16 v[%d:%d], v[%d:%d], v[%d:%d], %s' % (
                AC + 4 * t, AC + 4 * t + 3, CB + 4 * s_, CB + 4 * s_ + 3, f + 4 * t, f + 4 * t + 3,
                '0' if s_ == 0 else v(AC + 4 * t, 4)))
    stamp(A)
    vm.wait(A, 'epi')
    A('s_and_b32 s64, s7, 1')
    A('s_lshl_b32 s64, s64, 4')
    A('v_add_u32 v2, s64, v5')
    A('v_and_b32 v7, 1, v5')
    A('v_lshlrev_b32 v7, 4, v7')
    A('v_lshlrev_b32 v%d, v7, v%d' % (DS, DS))
    A('v_lshrrev_b32 v2, 1, v2')
    A('v_lshlrev_b32 v7, 2, v6')
    A('v_sub_u32 v2, v2, v7')
    for r in range(4):
        A('v_cmp_eq_u32 vcc, %d, v2' % r)
        A('v_cndmask_b32 v%d, 0, v%d, vcc' % (56 + r, DS))
    A('v_lshrrev_b32 v2, 1, v5')
    A('v_sub_u32 v2, v2, v7')
    A('v_and_b32 v11, 1, v5')
    A('v_cmp_eq_u32 vcc, 0, v11')
    for i in range(2):
        A('v_lshrrev_b32 v11, 16, v%d' % (GF + i))
        A('v_and_b32 v12, 0xffff0000, v%d' % (GF + i))
        A('v_cndmask_b32 v%d, v12, v11, vcc' % (13 + i))
        A('v_lshlrev_b32 v%d, 16, v%d' % (GF + i, GF + i))
    for i in range(2):
        for r in range(4):
            A('v_cmp_eq_u32 vcc, %d, v2' % (r - 8 * i))
            A('v_cndmask_b32 v%d, 0, v%d, vcc' % (60 + 4 * i + r, 13 + i))
    A('s_lshl_b32 s64, s5, 11')
    A('s_add_u32 s64, s64, 0x%x' % RED)
    A('v_add_u32 v2, s64, v4')
    A('v_xor_b32 v7, 0x2000, v2')
    l1, l2 = A.label('pl1'), A.label('plj')
    A('s_cmp_eq_u32 s61, 0')
    A('s_cbranch_scc0 ' + l1)
    A('ds_write_b128 v2, v[40:43]')
    A('ds_write_b128 v2, v[44:47] offset:1024')
    A('v_mfma_f32_16x16x32_bf16 v[48:51], v[56:59], v[%d:%d], v[32:35]' % (XF, XF + 3))
    A('v_mfma_f32_16x16x32_bf16 v[52:55], v[56:59], v[%d:%d], v[36:39]' % (XF + 4, XF + 7))
    A('s_branch ' + l2)
    A(l1 + ':')
    A('ds_write_b128 v2, v[32:35]')
    A('ds_write_b128 v2, v[36:39] offset:1024')
    A('v_mfma_f32_16x16x32_bf16 v[48:51], v[56:59], v[%d:%d], v[40:43]' % (XF, XF + 3))
    A('v_mfma_f32_16x16x32_bf16 v[52:55], v[56:59], v[%d:%d], v[44:47]' % (XF + 4, XF + 7))
    A(l2 + ':')
    for i in range(2):
        A('v_mfma_f32_16x16x32_bf16 v[%d:%d], v[%d:%d], v[%d:%d], 0' % (72 + 4 * i, 75 + 4 * i, BF, BF + 3, 60 + 4 * i, 63 + 4 * i))
    A('s_waitcnt lgkmcnt(0)')
    A('s_barrier')
    A('ds_read_b128 v[84:87], v7')
    A('ds_read_b128 v[88:91], v7 offset:1024')
    A('s_add_u32 s71, s70, 0x8000')
    for i in range(2):
        A('s_waitcnt lgkmcnt(%d)' % (1 - i))
        for r in range(4):
            k = 4 * i + r
            A('v_add_f32 v%d, v%d, v%d' % (84 + k, 84 + k, 48 + k))
            A('v_fmac_f32 v%d, v%d, v%d' % (72 + k, GF + i, 84 + k))
        A('buffer_store_dwordx4 v[%d:%d], v213, s[56:59], s%d offen%s' % (72 + 4 * i, 75 + 4 * i, 70 + i, opts.get('so', '')))
    stamp(A)
    stamp_end(A, 1)
    A(end + ':')
    A('s_endpgm')
```

```python
import sys
from asmlib import *
from g1 import *
from g2 import *
try:
    from cv import *
except ImportError:
    gen_cv = None

ref = open('gated_mix__ssm_conv_s5__ssm_conv_s4__prompt.s.ref').read().split('\n')
hdr = [l for l in ref if l.startswith(';') and '@launch' not in l and 'Override' not in l and 'grid=ceil' not in l]

def kernel(name, body, vgpr):
    lines, n = fix_hazards(body)
    sys.stderr.write('%s: %d lines, %d nops inserted\n' % (name, len(lines), n))
    t = ['.globl ' + name, '.p2align 8', '.type %s,@function' % name, name + ':'] + lines
    acc = (vgpr + 3) // 4 * 4
    d = ['.p2align 6', '.amdhsa_kernel ' + name, '  .amdhsa_next_free_vgpr %d' % vgpr, '  .amdhsa_next_free_sgpr 102',
         '  .amdhsa_accum_offset %d' % min(acc, 256), '  .amdhsa_group_segment_fixed_size 0', '  .amdhsa_kernarg_size 176',
         '  .amdhsa_user_sgpr_count 2', '  .amdhsa_user_sgpr_kernarg_segment_ptr 1',
         '  .amdhsa_system_sgpr_workgroup_id_x 1', '.end_amdhsa_kernel']
    return t, d

def build(opts):
    A = Asm()
    load_kernargs(A)
    A('s_cmp_ge_u32 s2, 256')
    A('s_cbranch_scc1 L_end1')
    STAMP['on'] = bool(opts.get('stamp'))
    stamp_begin(A)
    A('s_and_b32 s3, s2, 7')
    A('s_lshr_b32 s4, s2, 3')
    A('s_cmp_ge_u32 s4, 16')
    A('s_cbranch_scc1 L_conv')
    A('s_lshl_b32 s3, s3, 1')
    A('s_lshr_b32 s5, s4, 3')
    A('s_add_u32 s3, s3, s5')
    A('s_and_b32 s4, s4, 7')
    gen_g1(A, opts)
    A('L_conv:')
    lds1 = G1_LDS
    if gen_cv is not None:
        gen_cv(A, opts)
        lds1 = max(lds1, CV_LDS)
    A('L_end1:')
    A('s_endpgm')
    t1, d1 = kernel('mix_a_kernel', A.l, 256)
    B = Asm(); B.uid = 1000
    gen_g2(B, opts)
    t2, d2 = kernel('mix_b_kernel', B.l, 256)
    out = hdr + ['; @launch kernel=mix_a_kernel grid=(256,1,1) block=(512,1,1) lds=%d' % lds1,
                 '; @launch kernel=mix_b_kernel grid=(256,1,1) block=(512,1,1) lds=%d' % G2_LDS,
                 '.amdgcn_target "amdgcn-amd-amdhsa--gfx950"', '.text'] + t1 + t2 + ['.section .rodata,"a"'] + d1 + d2
    return '\n'.join(out) + '\n'

if __name__ == '__main__':
    path = sys.argv[1]
    opts = dict(kv.split('=', 1) for kv in sys.argv[2:])
    for kk in ('st', 'so', 'xl', 'cs'):
        if kk in opts: opts[kk] = ' ' + opts[kk].replace('+', ' ')
    open(path, 'w').write(build(opts))
```

```python
from asmlib import *
from g1 import *

RED = 131072
G2_LDS = RED + 32768

def gen_g2(A, opts):
    NH0, NH1, NH2 = [int(c) for c in opts.get('nh', '234')]
    GB = int(opts.get('gb', 3)); EP = int(opts.get('ep', 8))
    vm = VM()
    end = A.label('end2')
    load_kernargs(A)
    A('s_cmp_ge_u32 s2, 256')
    A('s_cbranch_scc1 ' + end)
    stamp_begin(A)
    A('s_and_b32 s3, s2, 7')
    A('s_lshl_b32 s3, s3, 2')
    A('s_lshr_b32 s4, s2, 6')
    A('s_add_u32 s3, s3, s4')
    A('s_bfe_u32 s4, s2, 0x30003')
    A('s_lshr_b32 s6, s3, 1')
    A('v_and_b32 v1, 63, v0')
    A('v_lshrrev_b32 v2, 6, v0')
    A('v_readfirstlane_b32 s5, v2')
    A('v_lshlrev_b32 v2, 1, v0')
    A('v_lshlrev_b32 v3, 4, v0')
    A('v_lshlrev_b32 v4, 4, v1')
    A('s_lshl_b32 s60, s3, 17')
    A('s_and_b32 s7, s5, 1')
    A('s_bfe_u32 s75, s5, 0x10001')
    A('s_lshr_b32 s61, s5, 2')
    A('s_lshl_b32 s62, s4, 1')
    A('s_add_u32 s62, s62, s7')
    A('s_lshl_b32 s63, s62, 16')
    A('s_lshl_b32 s64, s61, 13')
    A('s_add_u32 s63, s63, s64')
    A('s_lshl_b32 s64, s75, 14')
    A('s_add_u32 s63, s63, s64')
    A('s_add_u32 s63, s63, 0x%x' % WS_C)
    A('s_add_u32 s72, s63, 0x8000')
    A('s_waitcnt lgkmcnt(0)')
    srd(A, 52, P['ws'], WS_END)
    A('global_load_ushort v8, v2, s[%d:%d]' % (P['Lre'], P['Lre'] + 1))
    A('global_load_ushort v9, v2, s[%d:%d]' % (P['Lim'], P['Lim'] + 1))
    A('global_load_ushort v10, v2, s[%d:%d]' % (P['Aldt'], P['Aldt'] + 1))
    vm.issue('par', 3)
    EB = 12
    l = A.label('noE')
    for q in range(4):
        A('s_cmp_le_u32 s6, %d' % (4 * q))
        A('s_cbranch_scc1 ' + l)
        A('s_mov_b32 s64, 0x%x' % (WS_E + q * 8192))
        A('buffer_load_dwordx4 v[%d:%d], v3, s[52:55], s64 offen' % (EB + 4 * q, EB + 4 * q + 3))
    A(l + ':')
    vm.issue('E')
    HB = 64
    CB = 128
    XF, BF, GF, DS = 192, 200, 204, 212
    def ldH(o):
        A('s_add_u32 s64, s60, %d' % (o * 8192))
        A('s_add_u32 s65, s60, %d' % (o * 8192 + 65536))
        A('buffer_load_dwordx4 v[%d:%d], v3, s[52:55], s64 offen' % (HB + 8 * o, HB + 8 * o + 3))
        A('buffer_load_dwordx4 v[%d:%d], v3, s[52:55], s65 offen' % (HB + 8 * o + 4, HB + 8 * o + 7))
        vm.issue('H%d' % o, 2)
    def ldC(c):
        s_, j = c >> 1, c & 1
        sr = 72 if j else 63
        if s_ == 4: A('s_add_u32 s%d, s%d, 4096' % (sr, sr))
        A('buffer_load_dwordx4 v[%d:%d], v4, s[52:55], s%d offen offset:%d' % (CB + 4 * c, CB + 4 * c + 3, sr, (s_ % 4) * 1024))
        vm.issue('C%d' % c)
    def ldEpi():
        l1, l2 = A.label('eB'), A.label('eJ')
        A('s_cmp_lg_u32 s61, 0')
        A('s_cbranch_scc1 ' + l1)
        A('global_load_dwordx4 v[%d:%d], v220, s[%d:%d]' % (XF, XF + 3, P['x'], P['x'] + 1))
        A('global_load_dwordx4 v[%d:%d], v221, s[%d:%d]' % (XF + 4, XF + 7, P['x'], P['x'] + 1))
        A('global_load_short_d16_hi v%d, v224, s[%d:%d]' % (GF, P['ADs'], P['ADs'] + 1))
        A('global_load_short_d16_hi v%d, v224, s[%d:%d] offset:32' % (GF + 1, P['ADs'], P['ADs'] + 1))
        A('s_branch ' + l2)
        A(l1 + ':')
        A('s_add_u32 s68, s73, 0x10000')
        A('buffer_load_dwordx4 v[%d:%d], v222, s[52:55], s73 offen' % (XF, XF + 3))
        A('buffer_load_dwordx4 v[%d:%d], v222, s[52:55], s68 offen' % (XF + 4, XF + 7))
        A('buffer_load_dword v%d, v223, s[52:55], s74 offen' % GF)
        A('buffer_load_dword v%d, v223, s[52:55], s74 offen offset:64' % (GF + 1))
        A(l2 + ':')
        vm.issue('epi', 4)
    for o in range(NH0): ldH(o)
    A('v_and_b32 v5, 15, v1')
    A('v_lshrrev_b32 v6, 4, v1')
    A('s_lshl_b32 s66, s3, 6')
    A('s_lshl_b32 s67, s75, 5')
    A('s_add_u32 s66, s66, s67')
    A('s_lshl_b32 s67, s62, 5')
    A('s_lshl_b32 s68, s66, 10')
    A('s_lshl_b32 s69, s67, 1')
    A('s_add_u32 s68, s68, s69')
    A('v_lshlrev_b32 v7, 10, v5')
    A('v_lshl_add_u32 v7, v6, 4, v7')
    A('v_add_u32 v220, s68, v7')
    A('v_add_u32 v221, 0x4000, v220')
    A('s_lshl_b32 s68, s67, 12')
    A('s_lshl_b32 s69, s66, 1')
    A('s_add_u32 s68, s68, s69')
    A('s_add_u32 s73, s68, 0x%x' % WS_B)
    A('v_lshlrev_b32 v7, 12, v5')
    A('v_lshl_add_u32 v222, v6, 4, v7')
    A('s_lshl_b32 s68, s66, 2')
    A('s_add_u32 s74, s68, 0x%x' % WS_G)
    A('v_lshlrev_b32 v223, 2, v5')
    A('v_add_u32 v7, s67, v5')
    A('v_lshlrev_b32 v224, 1, v7')
    srd(A, 56, P['out'], 4194304)
    A('v_lshlrev_b32 v213, 11, v5')
    A('v_lshl_add_u32 v213, v6, 4, v213')
    A('s_lshl_b32 s70, s66, 11')
    A('s_lshl_b32 s71, s67, 2')
    A('s_add_u32 s70, s70, s71')
    A('v_and_b32 v7, 7, v0')
    A('v_and_b32 v28, 255, v0')
    A('v_lshlrev_b32 v28, 7, v28')
    A('v_lshl_or_b32 v28, v7, 4, v28')
    A('v_lshl_or_b32 v28, s61, 16, v28')
    A('v_lshrrev_b32 v7, 2, v1')
    A('v_and_b32 v11, 7, v7')
    A('v_bfe_u32 v29, v1, 1, 1')
    A('v_xor_b32 v11, v11, v29')
    A('v_lshlrev_b32 v7, 7, v7')
    A('v_lshl_or_b32 v7, v11, 4, v7')
    A('v_and_b32 v11, 1, v1')
    A('v_lshl_or_b32 v7, v11, 3, v7')
    A('s_lshl_b32 s64, s61, 16')
    A('s_mul_i32 s65, s75, 0x8040')
    A('s_add_u32 s64, s64, s65')
    A('v_xor_b32 v7, s64, v7')
    A('s_and_b32 s64, s5, 3')
    A('s_lshl_b32 s64, s64, 13')
    A('s_add_u32 s64, s64, 0x%x' % RED)
    A('v_add_u32 v218, s64, v4')
    for t in range(4):
        A('v_xor_b32 v%d, %d, v7' % (214 + t, 32 * t))
    stamp(A)
    vm.wait(A, 'E')
    A('v_lshlrev_b32 v8, 16, v8')
    A('v_lshlrev_b32 v9, 16, v9')
    A('v_lshlrev_b32 v10, 16, v10')
    A('v_mul_f32 v10, %s, v10' % f2u(LOG2E))
    A('v_exp_f32 v10, v10')
    A('v_cvt_pk_bf16_f32 v10, v10, v10')
    A('v_lshlrev_b32 v10, 16, v10')
    A('v_mul_f32 v8, v10, v8')
    A('v_mul_f32 v9, v10, v9')
    A('v_mul_f32 v8, %s, v8' % f2u(LOG2E))
    A('v_mul_f32 v9, %s, v9' % f2u(INV2PI))
    PR, PI = 32, 40
    LO, HI = 'op_sel_hi:[1,0%s]', 'op_sel:[0,1%s]'
    def pk(op, d, a_, b_, c_, sel, swap=False, neg=''):
        t = ',0' if c_ is not None else ''; u = ',1' if c_ is not None else ''
        m = ' op_sel:[%d,%d%s] op_sel_hi:[%d,%d%s]' % (1 if swap else 0, sel, t, 0 if swap else 1, sel, u)
        if 'l' in neg: m += ' neg_lo:[1,0%s]' % t
        if 'h' in neg: m += ' neg_hi:[1,0%s]' % t
        A('v_pk_%s_f32 v[%d:%d], v[%d:%d], v[%d:%d]%s%s' % (op, d, d + 1, a_, a_ + 1, b_, b_ + 1, '' if c_ is None else ', v[%d:%d]' % (c_, c_ + 1), m))
    cexp(A, 48, 49, 8, 9, 128.0, 2, 7)
    cexp(A, PR, PI, 8, 9, 1.0, 2, 7)
    for o in range(NH0, NH1): ldH(o)
    A('v_mov_b32 v50, 0')
    A('v_mov_b32 v51, 0')
    A('v_mul_f32 v%d, v%d, v%d' % (PR + 1, PR, PR))
    A('v_mul_f32 v%d, v%d, v%d' % (PI + 1, PR, PI))
    A('v_fma_f32 v%d, -v%d, v%d, v%d' % (PR + 1, PI, PI, PR + 1))
    A('v_add_f32 v%d, v%d, v%d' % (PI + 1, PI + 1, PI + 1))
    def pw2(d, x, m):
        pk('mul', PR + d, PR + x, PR + m, None, 1)
        pk('mul', PI + d, PR + x, PI + m, None, 1)
        pk('fma', PR + d, PI + x, PI + m, PR + d, 1, neg='lh')
        pk('fma', PI + d, PI + x, PR + m, PI + d, 1)
    pw2(2, 0, 0); pw2(4, 0, 2); pw2(6, 2, 2)
    l = A.label('Sdone')
    for c in range(15):
        A('s_cmp_le_u32 s6, %d' % c)
        A('s_cbranch_scc1 ' + l)
        T = 54 + 2 * (c & 1)
        A('v_lshlrev_b32 v%d, 16, v%d' % (T, EB + c))
        A('v_and_b32 v%d, 0xffff0000, v%d' % (T + 1, EB + c))
        pk('fma', T, 50, 48, T, 0)
        pk('fma', 50, 50, 48, T, 1, swap=True, neg='l')
    A(l + ':')
    for o in range(NH1, NH2): ldH(o)
    l = A.label('even')
    A('s_bitcmp0_b32 s3, 0')
    A('s_cbranch_scc1 ' + l)
    cexp(A, 48, 49, 8, 9, 64.0, 2, 7)
    pk('mul', 52, 50, 48, None, 0)
    pk('fma', 50, 50, 48, 52, 1, swap=True, neg='l')
    A(l + ':')
    stamp(A)
    def gbar(grp):
        l = A.label('gb')
        A('s_cmp_lg_u32 s61, %d' % grp)
        A('s_cbranch_scc1 ' + l)
        A('s_barrier')
        A(l + ':')
    z = 50
    rest = []
    for o in range(NH2, 8): rest += [lambda o=o: ldH(o), lambda: None]
    rest += [lambda s_=s_: ldC(s_) for s_ in range(EP)] + [ldEpi] + [lambda s_=s_: ldC(s_) for s_ in range(EP, 16)]
    for o in range(8):
        if o == GB: gbar(1)
        vm.wait(A, 'H%d' % o)
        for _ in range(2 if o < 6 else 3):
            if rest: rest.pop(0)()
        hr, hi = HB + 8 * o, HB + 8 * o + 4
        zn = 102 - z
        for q in range(4):
            T = 54 + 4 * (q & 1)
            A('v_lshlrev_b32 v%d, 16, v%d' % (T, hr + q))
            A('v_and_b32 v%d, 0xffff0000, v%d' % (T + 1, hr + q))
            A('v_lshlrev_b32 v%d, 16, v%d' % (T + 2, hi + q))
            A('v_and_b32 v%d, 0xffff0000, v%d' % (T + 3, hi + q))
            pk('fma', T, PR + 2 * q, z, T, 0)
            pk('fma', T + 2, PR + 2 * q, z, T + 2, 1)
            if o < 7 and q == 0: pk('mul', zn, z, PR + 6, None, 1)
            if o < 7 and q == 1: pk('fma', zn, z, PI + 6, zn, 1, swap=True, neg='l')
            if q == 2: A('v_xor_b32 v2, %d, v28' % (16 * o))
            pk('fma', T, PI + 2 * q, z, T, 1, neg='lh')
            pk('fma', T + 2, PI + 2 * q, z, T + 2, 0)
            A('v_cvt_pk_bf16_f32 v%d, v%d, v%d' % (hr + q, T, T + 1))
            A('v_cvt_pk_bf16_f32 v%d, v%d, v%d' % (hi + q, T + 2, T + 3))
        A('ds_write_b128 v2, v[%d:%d]' % (hr, hr + 3))
        A('ds_write_b128 v2, v[%d:%d] offset:32768' % (hi, hi + 3))
        z = zn
    stamp(A)
    for _ in range(3): rest.pop(0)()
    AC = 32
    FR = 64
    SEL, OB = 96, 104
    lB, lJ = A.label('mB'), A.label('mJ')
    A('s_cmp_lg_u32 s61, 0')
    A('s_cbranch_scc1 ' + lB)
    for r in range(32): A('v_mov_b32 v%d, 0' % (AC + r))
    A('s_waitcnt lgkmcnt(0)')
    A('s_barrier')
    A('s_branch ' + lJ)
    A(lB + ':')
    A('s_waitcnt lgkmcnt(0)')
    A('s_barrier')
    for k in range(8): A('ds_read_b128 v[%d:%d], v218 offset:%d' % (AC + 4 * k, AC + 4 * k + 3, 1024 * k))
    A(lJ + ':')
    stamp(A)
    def rd(s_, u):
        f = FR + (s_ & 1) * 16
        A('ds_read_b64_tr_b16 v[%d:%d], v%d offset:%d' % (f + 4 * u, f + 4 * u + 1, 214 + u, s_ * 4096))
        A('ds_read_b64_tr_b16 v[%d:%d], v%d offset:%d' % (f + 4 * u + 2, f + 4 * u + 3, 214 + u, s_ * 4096 + 2048))
    sh = ['v_lshrrev_b32 v2, 1, v5', 'v_lshlrev_b32 v7, 2, v6', 'v_sub_u32 v2, v2, v7', 'v_and_b32 v11, 1, v5', 'v_cmp_eq_u32 vcc, 0, v11']
    for i in range(2):
        sh += ['v_lshrrev_b32 v11, 16, v%d' % (GF + i), 'v_and_b32 v12, 0xffff0000, v%d' % (GF + i),
               'v_cndmask_b32 v%d, v12, v11, vcc' % (13 + i), 'v_lshlrev_b32 v%d, 16, v%d' % (GF + i, GF + i)]
    for i in range(2):
        for r in range(4):
            sh += ['v_cmp_eq_u32 vcc, %d, v2' % (r - 8 * i), None, 'v_cndmask_b32 v%d, 0, v%d, vcc' % (SEL + 4 * i + r, 13 + i)]
    for u in (2, 3): rd(0, u)
    A('s_waitcnt lgkmcnt(8)')
    for u in (0, 1): rd(0, u)
    for s_ in range(8):
        f = FR + (s_ & 1) * 16
        for _ in range(2):
            if rest: rest.pop(0)()
        vm.wait(A, 'C%d' % (2 * s_ + 1))
        if s_ == 3: vm.wait(A, 'epi')
        for n_, u in enumerate((2, 3, 0, 1)):
            if s_ < 7:
                rd(s_ + 1, u)
                A('s_waitcnt lgkmcnt(8)')
            else:
                A('s_waitcnt lgkmcnt(%d)' % (6 - 2 * n_))
            for j in range(2):
                d = AC + 16 * j + 4 * u
                A('v_mfma_f32_16x16x32_bf16 v[%d:%d], v[%d:%d], v[%d:%d], v[%d:%d]' % (
                    d, d + 3, CB + 8 * s_ + 4 * j, CB + 8 * s_ + 4 * j + 3, f + 4 * u, f + 4 * u + 3, d, d + 3))
                if s_ >= 3:
                    for _ in range(1 + j):
                        if sh:
                            t = sh.pop(0)
                            if t is None: break
                            A(t)
    assert not rest and not sh
    stamp(A)
    lB = A.label('fB')
    A('s_cmp_lg_u32 s61, 0')
    A('s_cbranch_scc1 ' + lB)
    for j in range(2):
        for i in range(2):
            d = AC + 16 * j + 4 * i
            A('v_mfma_f32_16x16x32_bf16 v[%d:%d], v[%d:%d], v[%d:%d], v[%d:%d]' % (d, d + 3, SEL + 4 * j, SEL + 4 * j + 3, XF + 4 * i, XF + 4 * i + 3, d, d + 3))
    for k in (2, 3, 6, 7, 0, 1, 4, 5): A('ds_write_b128 v218, v[%d:%d] offset:%d' % (AC + 4 * k, AC + 4 * k + 3, 1024 * k))
    A('s_waitcnt lgkmcnt(0)')
    A('s_barrier')
    if STAMP['on']:
        n0 = STAMP['n']; stamp(A); stamp_end(A, 1); STAMP['n'] = n0
    A('s_endpgm')
    A(lB + ':')
    for j in range(2):
        for i in range(2):
            d = OB + 8 * j + 4 * i
            A('v_mfma_f32_16x16x32_bf16 v[%d:%d], v[%d:%d], v[%d:%d], 0' % (d, d + 3, XF + 4 * j, XF + 4 * j + 3, SEL + 4 * i, SEL + 4 * i + 3))
            k = 4 * j + 2 + i
            A('ds_write_b128 v218, v[%d:%d] offset:%d' % (AC + 4 * k, AC + 4 * k + 3, 1024 * (2 * j + i)))
    A('v_xor_b32 v7, 0x4000, v218')
    A('s_add_u32 s71, s70, 0x8000')
    A('s_waitcnt lgkmcnt(0)')
    A('s_barrier')
    for k in range(4): A('ds_read_b128 v[%d:%d], v7 offset:%d' % (64 + 4 * k, 67 + 4 * k, 1024 * k))
    for j in range(2):
        for i in range(2):
            k = 2 * j + i
            A('s_waitcnt lgkmcnt(%d)' % (3 - k))
            for r in range(4): A('v_add_f32 v%d, v%d, v%d' % (64 + 4 * k + r, 64 + 4 * k + r, AC + 16 * j + 4 * i + r))
            for r in range(4): A('v_fmac_f32 v%d, v%d, v%d' % (OB + 4 * k + r, GF + i, 64 + 4 * k + r))
            A('buffer_store_dwordx4 v[%d:%d], v213, s[56:59], s%d offen offset:%d%s' % (OB + 4 * k, OB + 4 * k + 3, 70 + i, 64 * j, opts.get('so', '')))
    stamp(A)
    stamp_end(A, 1)
    A(end + ':')
    A('s_endpgm')
```

```python
from asmlib import *
from g1 import *

FT = 0
FTS = 2064
XT = 117760
XTS = 4608
KT = XT + 4 * XTS
KCP = 2496
KTS = 2 * KCP
CV_LDS = KT + 4 * KTS + 128
CRED = 0

class Stream:
    def __init__(self, A, look=10):
        self.A = A; self.reads = []; self.ops = []; self.look = look
    def read(self, texts, after=None):
        self.reads.append((texts, after)); return len(self.reads) - 1
    def op(self, text, needs=()):
        self.ops.append((text, tuple(needs))); return len(self.ops) - 1
    def emit(self):
        A = self.A
        nxt = 0
        issued = []
        cnt = 0
        done = 0
        for j, (text, needs) in enumerate(self.ops):
            mx = max(needs) if needs else -1
            budget = 2 if nxt > mx else 99
            while nxt < len(self.reads):
                texts, after = self.reads[nxt]
                if nxt > mx:
                    if budget <= 0: break
                    if after is not None and after >= j: break
                    if cnt + len(texts) - done > self.look: break
                else:
                    assert after is None or after < j, (j, nxt, after)
                    if cnt + len(texts) - done > 15:
                        k = cnt + len(texts) - 15
                        A('s_waitcnt lgkmcnt(%d)' % (cnt - k)); done = k
                for t in texts: A(t)
                cnt += len(texts); issued.append(cnt); nxt += 1
                budget -= len(texts)
            if needs:
                k = max(issued[n] for n in needs)
                if k > done:
                    A('s_waitcnt lgkmcnt(%d)' % (cnt - k)); done = k
            A(text)
        assert nxt == len(self.reads)

def gen_cv(A, opts):
    ST = opts.get('st', '')
    vm = VM()
    A('v_and_b32 v1, 63, v0')
    A('v_lshrrev_b32 v2, 6, v0')
    A('s_lshl_b32 s3, s3, 6')
    A('s_and_b32 s4, s4, 15')
    A('s_lshl_b32 s5, s4, %d' % (5 if int(opts.get('xr', 1)) else 9))
    A('v_add_u32 v248, s5, v0')
    A('v_and_b32 v248, 0x1ff, v248')
    A('v_readfirstlane_b32 s5, v2')
    A('s_lshl_b32 s4, s4, 2')
    A('s_add_u32 s3, s3, s4')
    A('s_lshl_b32 s60, s3, 1')
    A('v_lshlrev_b32 v2, 12, v248')
    A('v_add_u32 v2, s60, v2')
    A('s_and_b32 s6, s5, 3')
    A('s_lshr_b32 s7, s5, 2')
    A('s_add_u32 s4, s3, s6')
    A('s_lshl_b32 s60, s4, 8')
    A('s_lshl_b32 s61, s7, 7')
    A('s_add_u32 s60, s60, s61')
    A('v_lshl_add_u32 v3, v1, 1, s60')
    A('s_lshl_b32 s61, s4, 1')
    A('v_mov_b32 v4, s61')
    A('s_waitcnt lgkmcnt(0)')
    for i, n in enumerate(('BAre', 'BAim', 'BBre', 'BBim', 'BCre', 'BCim')):
        A('global_load_ushort v%d, v3, s[%d:%d]' % (8 + i, P[n], P[n] + 1))
    A('global_load_ushort v14, v4, s[%d:%d]' % (P['Bldt'], P['Bldt'] + 1))
    A('global_load_ushort v15, v4, s[%d:%d]' % (P['BDs'], P['BDs'] + 1))
    vm.issue('par', 8)
    XG = 240
    xg = list(range(4))
    def xgather(n):
        for _ in range(n):
            if not xg: return
            r = xg.pop(0)
            A('global_load_dwordx2 v[%d:%d], v2, s[%d:%d] offset:%d%s' % (XG + 2 * r, XG + 2 * r + 1, P['x'], P['x'] + 1, 1024 * r, opts.get('xl', '')))
            vm.issue('x', 1)
    XE = int(opts.get('xe', 1))
    A('s_barrier')
    xgather(XE)
    srd(A, 56, P['ws'], WS_END)
    A('s_mul_i32 s62, s6, %d' % KTS)
    A('s_add_u32 s62, s62, %d' % KT)
    A('s_mul_i32 s63, s7, %d' % KCP)
    A('s_add_u32 s63, s63, s62')
    A('s_mul_i32 s64, s6, %d' % XTS)
    A('s_add_u32 s64, s64, %d' % XT)
    for r in range(4): A('v_mov_b32 v%d, 0' % (16 + r))
    A('v_lshl_add_u32 v5, v1, 4, s63')
    A('ds_write_b128 v5, v[16:19]')
    A('ds_write_b128 v5, v[16:19] offset:1024')
    A('v_lshl_add_u32 v5, v1, 3, s63')
    A('ds_write_b64 v5, v[16:17] offset:2048')
    A('v_lshl_add_u32 v5, v1, 3, s64')
    A('ds_write_b64 v5, v[16:17]')
    A('v_and_b32 v6, 15, v1')
    A('v_lshrrev_b32 v7, 4, v1')
    A('v_mul_u32_u24 v5, 49, v7')
    A('v_add3_u32 v5, v5, v6, s7')
    A('v_lshl_add_u32 v5, v5, 1, s63')
    A('v_lshl_add_u32 v16, v7, 1, 2')
    A('v_mov_b32 v17, 0x3f80')
    A('v_cmp_le_u32 vcc, v6, v16')
    A('s_and_saveexec_b64 s[70:71], vcc')
    A('ds_write_b16 v5, v17 offset:%d' % (2 * (1024 + 26)))
    A('s_mov_b64 exec, s[70:71]')
    A('s_lshl_b32 s65, s6, 9')
    A('s_lshl_b32 s66, s7, 8')
    A('s_add_u32 s65, s65, s66')
    A('s_add_u32 s66, s65, %d' % (31 * FTS))
    A('s_mov_b32 m0, s65')
    STAMP['n'] = 2
    stamp(A)
    vm.wait(A, 'par')
    for r in range(8, 16): A('v_lshlrev_b32 v%d, 16, v%d' % (r, r))
    A('v_mul_f32 v14, %s, v14' % f2u(LOG2E))
    A('v_exp_f32 v14, v14')
    A('v_cvt_pk_bf16_f32 v14, v14, v14')
    A('v_lshlrev_b32 v14, 16, v14')
    for r in (8, 9, 10, 11): A('v_mul_f32 v%d, v14, v%d' % (r, r))
    A('v_mul_f32 v8, %s, v8' % f2u(LOG2E))
    A('v_mul_f32 v9, %s, v9' % f2u(INV2PI))
    def cm(d, a_, b_):
        return ['v_pk_mul_f32 v[%d:%d], v[%d:%d], v[%d:%d] op_sel:[0,0] op_sel_hi:[0,1]' % (d, d + 1, a_, a_ + 1, b_, b_ + 1),
                'v_pk_fma_f32 v[%d:%d], v[%d:%d], v[%d:%d], v[%d:%d] op_sel:[1,1,0] op_sel_hi:[1,0,1] neg_lo:[1,0,0]' % (d, d + 1, a_, a_ + 1, b_, b_ + 1, d, d + 1)]
    pk = [0]
    hi_m0 = [False]
    def put(row, z, neg=False):
        t = 20 + (pk[0] & 3); pk[0] += 1
        off = row * FTS - (31 * FTS if hi_m0[0] else 0)
        assert 0 <= off < 65536
        return ['v_cvt_pk_bf16_f32 v%d, v%d, %sv%d' % (t, z, '-' if neg else '', z + 1),
                'ds_write_addtid_b32 v%d offset:%d' % (t, off)]
    def inter(*seqs):
        n = max(len(q) for q in seqs)
        for i in range(n):
            for q in seqs:
                if i < len(q): A(q[i])
    F = lambda b: 32 + 2 * b
    cexp(A, F(1), F(1) + 1, 8, 9, 1.0, 16, 17)
    cexp(A, F(16), F(16) + 1, 8, 9, 16.0, 18, 19)
    O = lambda k: 66 + 2 * k
    cexp(A, O(1), O(1) + 1, 8, 9, 256.0, 16, 17)
    xgather(1)
    G0, G1 = 24, 26
    inter(cm(G0, 12, 10), cm(F(2), F(1), F(1)))
    A('v_mov_b32 v28, 0x3f80')
    A('ds_write_addtid_b32 v28 offset:%d' % (16 * FTS))
    for t in put(17, F(1)) + put(0, G0, True): A(t)
    g, gn = G0, G1
    for i in range(1, 16):
        seqs = [cm(gn, g, F(16)) + put(i, gn, True)]
        b = i + 2
        if b <= 15: seqs.append(cm(F(b), F(b - 2), F(2)))
        if i + 1 <= 15: seqs.append(put(16 + i + 1, F(i + 1)))
        if 2 <= i <= 7: seqs.append(cm(O(i), O(i - 1), O(1)))
        inter(*seqs)
        if i in (4, 9, 14): xgather(1)
        g, gn = gn, g
    A('s_mov_b32 m0, s66'); hi_m0[0] = True
    for t in put(32, O(1)): A(t)
    lst = [(32 + m, O(1), F(2 * m)) for m in range(1, 9)]
    lst += [(41 + n, O(2 + (n >> 2)), F(4 * ((n & 3) + 1))) for n in range(8)]
    lst += [(49 + n, O(4 + (n >> 1)), F(8 * ((n & 1) + 1))) for n in range(8)]
    for i in range(0, len(lst), 4):
        inter(*[cm(82 + 2 * q, lst[i + q][1], lst[i + q][2]) + put(lst[i + q][0], 82 + 2 * q) for q in range(4)])
    assert not xg
    stamp(A)
    NCP = int(opts.get('ncp', 1))
    def cld(i): return 'global_load_dwordx4 v[%d:%d], v249, s[68:69] offset:%d' % (212 + 4 * i, 215 + 4 * i, 64 * i)
    def cst(i): return 'buffer_store_dwordx4 v[%d:%d], v250, s[56:59], s%d offen offset:%d%s' % (212 + 4 * i, 215 + 4 * i, 72 + (i >> 2), 1024 * (i & 3), opts.get('cs', ''))
    def inject(i0):
        body = A.l[i0:]; del A.l[i0:]
        nm = sum(1 for t in body if 'v_mfma' in t)
        L0, L1, S0 = [int(x) * nm // 100 for x in opts.get('cpos', '0,45,60').split(',')]
        ev = {}
        for i in range(NCP):
            ev.setdefault(L0 + (L1 - L0) * i // NCP, []).append(cld(i))
            ev.setdefault(S0 + (nm - 1 - S0) * i // NCP, []).extend(['s_waitcnt vmcnt(%d)' % (NCP - 1), cst(i)])
        k = 0
        for t in body:
            A.l.append(t)
            if 'v_mfma' in t:
                for q in ev.get(k, []): A(q)
                k += 1
    def xtable():
        A('s_mov_b32 s67, 0x05040100')
        A('s_mov_b32 s68, 0x07060302')
        A('v_lshlrev_b32 v5, 3, v248')
        A('v_add_u32 v5, %d, v5' % (XT + 512))
        vm.wait(A, 'x')
        for c in range(4):
            sel = 's67' if (c & 1) == 0 else 's68'
            h = c >> 1
            A('v_perm_b32 v%d, v%d, v%d, %s' % (232 + 2 * c, XG + 2 + h, XG + h, sel))
            A('v_perm_b32 v%d, v%d, v%d, %s' % (233 + 2 * c, XG + 6 + h, XG + 4 + h, sel))
            A('ds_write_b64 v5, v[%d:%d] offset:%d' % (232 + 2 * c, 233 + 2 * c, c * XTS))
        if NCP == 8:
            A('s_bfe_u32 s67, s2, 0x40003')
            A('s_lshl_b32 s67, s67, 3')
            A('s_add_u32 s67, s67, s5')
            A('s_lshl_b32 s67, s67, 3')
            A('s_and_b32 s72, s2, 7')
            A('s_lshl_b32 s72, s72, 20')
            A('s_add_u32 s72, s72, 0x%x' % WS_C)
        else:
            A('s_and_b32 s67, s2, 127')
            A('s_lshl_b32 s67, s67, 3')
            A('s_add_u32 s67, s67, s5')
            A('s_mov_b32 s72, 0x%x' % WS_C)
        A('s_lshl_b32 s73, s67, 10')
        A('s_add_u32 s72, s72, s73')
        A('s_add_u32 s73, s72, 0x1000')
        A('s_bitcmp1_b32 s67, 4')
        A('s_cselect_b64 s[68:69], s[%d:%d], s[%d:%d]' % (P['Cim'], P['Cim'] + 1, P['Cre'], P['Cre'] + 1))
        A('s_lshr_b32 s74, s67, 5')
        A('s_lshl_b32 s74, s74, 14')
        A('s_and_b32 s67, s67, 15')
        A('s_lshl_b32 s67, s67, 6')
        A('s_add_u32 s67, s67, s74')
        A('v_lshlrev_b32 v249, 10, v6')
        A('v_lshl_add_u32 v249, v7, 4, v249')
        A('v_add_u32 v249, s67, v249')
        A('v_lshlrev_b32 v250, 4, v1')
        A('s_waitcnt lgkmcnt(0)')
        A('s_barrier')
    aG, aX, a80, a81, a82, a4, aW, aT = 8, 9, 10, 11, 12, 13, 14, 16
    A('v_mul_u32_u24 v%d, %d, v6' % (aG, FTS))
    A('v_and_b32 v2, 1, v7')
    A('v_lshlrev_b32 v2, 8, v2')
    A('v_lshrrev_b32 v3, 1, v7')
    A('v_lshl_add_u32 v2, v3, 7, v2')
    A('s_lshl_b32 s65, s6, 9')
    A('v_add_u32 v2, s65, v2')
    A('v_add_u32 v%d, v%d, v2' % (aG, aG))
    A('v_lshlrev_b32 v%d, 5, v6' % aX)
    A('v_lshl_add_u32 v%d, v7, 4, v%d' % (aX, aX))
    A('v_add_u32 v%d, s64, v%d' % (aX, aX))
    A('v_and_b32 v3, 1, v6')
    A('v_xor_b32 v3, 1, v3')
    A('v_mul_u32_u24 v3, %d, v3' % (KCP + 2))
    A('v_sub_u32 v4, 15, v6')
    A('v_lshl_add_u32 v3, v4, 1, v3')
    A('v_add_u32 v3, s62, v3')
    A('v_lshl_add_u32 v%d, v7, 4, v3' % a80)
    A('v_add_u32 v%d, 1024, v%d' % (a81, a80))
    A('v_add_u32 v%d, 2048, v%d' % (a82, a80))
    A('v_lshl_add_u32 v%d, v7, 3, v3' % a4)
    A('v_add_u32 v%d, 1216, v%d' % (a4, a4))
    lB, lJ = A.label('cvB'), A.label('cvJ')
    AC = 32
    def rd128(dst, ad, off): return ['ds_read_b128 v[%d:%d], v%d offset:%d' % (dst, dst + 3, ad, off)]
    def rd8(dst, dw):
        ad = a80 + dw // 256; o = dw % 256
        assert o + 3 <= 255
        return ['ds_read2_b32 v[%d:%d], v%d offset0:%d offset1:%d' % (dst, dst + 1, ad, o, o + 1),
                'ds_read2_b32 v[%d:%d], v%d offset0:%d offset1:%d' % (dst + 2, dst + 3, ad, o + 2, o + 3)]
    def rd4(dst, dw0, dw1):
        return ['ds_read2_b32 v[%d:%d], v%d offset0:%d offset1:%d' % (dst, dst + 1, a4, dw0 - 304, dw0 - 303),
                'ds_read2_b32 v[%d:%d], v%d offset0:%d offset1:%d' % (dst + 2, dst + 3, a4, dw1 - 304, dw1 - 303)]
    def mf(d, a_, b_, c_):
        return 'v_mfma_f32_16x16x32_bf16 v[%d:%d], v[%d:%d], v[%d:%d], %s' % (d, d + 3, a_, a_ + 3, b_, b_ + 3, '0' if c_ is None else v(c_, 4))
    def tabwrite(D, off):
        A('v_cvt_pk_bf16_f32 v18, v%d, v%d' % (D + 3, D + 2))
        A('v_cvt_pk_bf16_f32 v19, v%d, v%d' % (D + 1, D))
        A('v_alignbit_b32 v20, v19, v18, 16')
        A('ds_write_b64 v%d, v[18:19] offset:%d' % (aW, off))
        A('ds_write_b16 v%d, v18 offset:%d' % (aW, off + KCP + 2))
        A('ds_write_b32 v%d, v20 offset:%d' % (aW, off + KCP + 4))
        A('ds_write_b16_d16_hi v%d, v19 offset:%d' % (aW, off + KCP + 8))
    def dense(S, sigmas, touched, XR, KR, last):
        for n, sg in enumerate(sigmas):
            bank = last['n'] & 1; last['n'] += 1
            xb, kb = XR + 32 * bank, KR + 12 * bank
            prev = last.get(bank)
            Bs = [0, 1, 2] if sg == 0 else [0, 1]
            kid = {}; xid = {}
            aft = lambda r: (prev or {}).get(r)
            kid[0] = S.read(rd8(kb, 256 - 16 * sg), aft(kb))
            xid[0] = S.read(rd128(xb, aX, 480 - 64 * sg), aft(xb))
            for B in Bs[1:]:
                kid[B] = S.read(rd8(kb + 4 * B, 256 - 16 * (sg + 8 * B)), aft(kb + 4 * B))
            for tp in range(1, 8):
                xid[tp] = S.read(rd128(xb + 4 * tp, aX, 480 + 512 * tp - 64 * sg), aft(xb + 4 * tp))
            use = {}
            for tp in range(8):
                for B in Bs:
                    T = tp + B
                    if T > 7: continue
                    j = S.op(mf(AC + 4 * T, kb + 4 * B, xb + 4 * tp, AC + 4 * T if T in touched else None), (kid[B], xid[tp]))
                    touched.add(T); use[kb + 4 * B] = j; use[xb + 4 * tp] = j
            if prev:
                for r, j in prev.items(): use.setdefault(r, j)
            last[bank] = use
    A('s_cmp_lg_u32 s7, 0')
    A('s_cbranch_scc1 ' + lB)
    A('v_bfe_u32 v3, v6, 1, 1')
    A('v_add_u32 v3, v3, v6')
    A('v_lshrrev_b32 v3, 1, v3')
    A('v_mul_u32_u24 v3, %d, v3' % FTS)
    A('v_add_u32 v3, %d, v3' % (32 * FTS))
    A('v_add_u32 v%d, v3, v2' % aT)
    A('v_lshlrev_b32 v3, 5, v6')
    A('v_lshl_add_u32 v3, v7, 3, v3')
    A('s_add_u32 s65, s62, 560')
    A('v_sub_u32 v%d, s65, v3' % aW)
    A('v_cmp_eq_u32 vcc, 0, v1')
    A('v_cndmask_b32 v24, 0, v15, vcc')
    for r in (25, 26, 27): A('v_mov_b32 v%d, 0' % r)
    A('s_waitcnt lgkmcnt(0)')
    A('s_barrier')
    stamp(A); nst = STAMP['n']
    S = Stream(A, 14)
    for s_ in range(8):
        f = 64 + 12 * s_
        g_ = S.read(rd128(f, aG, 16 * s_)); f0 = S.read(rd128(f + 4, aG, 16 * FTS + 16 * s_)); f1 = S.read(rd128(f + 8, aT, 16 * s_))
        S.op(mf(24, f + 4, f, 24), (g_, f0))
        S.op(mf(28, f + 8, f, 28 if s_ else None), (g_, f1))
    S.emit()
    tabwrite(24, 8 + 512)
    tabwrite(28, 8)
    A('v_cvt_pk_bf16_f32 v18, 0, v31')
    A('v_cvt_pk_bf16_f32 v19, v31, v31')
    A('s_mov_b32 exec_lo, 0')
    A('s_mov_b32 exec_hi, 0x80000000')
    A('ds_write_b64 v%d, v[18:19]' % aW)
    A('ds_write_b32 v%d, v19 offset:%d' % (aW, KCP + 4))
    A('ds_write_b16 v%d, v19 offset:%d' % (aW, KCP + 8))
    A('s_mov_b64 exec, -1')
    stamp(A)
    xtable()
    stamp(A)
    touched = set(); last = {'n': 0}; i0 = len(A.l)
    S = Stream(A, 12)
    NA = int(opts.get('na', 7))
    dense(S, list(range(NA)), touched, 64, 128, last)
    S.emit()
    inject(i0)
    A('s_lshl_b32 s65, s5, 12')
    A('v_lshl_add_u32 v2, v1, 4, s65')
    for t in range(4): A('ds_write_b128 v2, v[%d:%d] offset:%d' % (AC + 16 + 4 * t, AC + 16 + 4 * t + 3, CRED + 1024 * t))
    A('s_branch ' + lJ)
    A(lB + ':')
    A('v_add_u32 v%d, %d, v%d' % (aT, 41 * FTS, aG))
    A('v_and_b32 v2, 3, v6')
    A('v_lshlrev_b32 v2, 6, v2')
    A('v_lshrrev_b32 v3, 2, v6')
    A('v_lshlrev_b32 v3, 4, v3')
    A('v_sub_u32 v2, v2, v3')
    A('v_add_u32 v2, 652, v2')
    A('v_and_b32 v3, 1, v6')
    A('v_mul_u32_u24 v3, 80, v3')
    A('v_lshrrev_b32 v4, 1, v6')
    A('v_lshlrev_b32 v4, 4, v4')
    A('v_sub_u32 v3, v3, v4')
    A('v_add_u32 v3, %d, v3' % (924 + 64))
    A('v_cmp_gt_u32 vcc, 8, v6')
    A('v_cndmask_b32 v2, v3, v2, vcc')
    A('v_lshlrev_b32 v3, 2, v7')
    A('v_sub_u32 v2, v2, v3')
    A('v_lshl_add_u32 v%d, v2, 1, s62' % aW)
    A('v_mov_b32 v17, s62')
    A('s_waitcnt lgkmcnt(0)')
    A('s_barrier')
    STAMP['n'] = nst - 1; stamp(A)
    WR, TB8, TB16, SPF, XZ, ZD, ZA = 64, 80, 104, 120, 124, 140, 188
    S = Stream(A, 14)
    for s_ in range(8):
        f = 140 + 8 * s_
        g_ = S.read(rd128(f, aG, 16 * s_)); f0 = S.read(rd128(f + 4, aT, 16 * s_))
        S.op(mf(24, f, f + 4, 24 if s_ else None), (g_, f0))
    S.emit()
    for w, tw in enumerate((0, 54, 104, 154)):
        for t in rd8(WR + 4 * w, 512 + tw // 2): A(t)
    tabwrite(24, 0)
    A('v_cvt_pk_bf16_f32 v19, v27, v27')
    A('s_mov_b32 exec_lo, 0')
    A('s_mov_b32 exec_hi, 0x00800000')
    A('ds_write_b16 v17, v19 offset:%d' % (2 * 587))
    A('ds_write_b16 v17, v19 offset:%d' % (2 * 588))
    A('ds_write_b32 v17, v19 offset:%d' % (KCP + 2 * 588))
    A('s_mov_b64 exec, -1')
    stamp(A)
    xtable()
    stamp(A)
    if opts.get('bp'): A('s_setprio %s' % opts['bp'])
    touched = set(); i0 = len(A.l)
    S = Stream(A, 12)
    xuse = {}
    xid = {}
    def xreads(b):
        xb = XZ + 8 * (b & 1)
        xid[b] = (S.read(rd128(xb, aX, 480 + 512 * b), xuse.get(b - 2)), S.read(rd128(xb + 4, aX, 464 + 512 * b), xuse.get(b - 2)))
    def zops(b):
        xb = XZ + 8 * (b & 1); zd = ZD + 24 * (b & 1)
        cl = [(0, 0), (1, 0), (0, 1), (1, 1)] + ([(2, 0), (3, 1)] if b < 4 else [])
        for i, (w, h) in enumerate(cl):
            xuse[b] = S.op(mf(zd + 4 * i, xb + 4 * h, WR + 4 * w, None), (xid[b][h],))
        if b < 4:
            T = b + 4
            xuse[b] = S.op(mf(AC + 4 * T, SPF, xb, AC + 4 * T if T in touched else None), (spid, xid[b][0])); touched.add(T)
    def cvts(b):
        zd = ZD + 24 * (b & 1); za = ZA + 12 * (b & 1)
        n = 6 if b < 4 else 4
        return ['v_cvt_pk_bf16_f32 v%d, v%d, v%d' % (za + k, zd + 2 * k, zd + 2 * k + 1) for k in range(2 * n)]
    def cls(b):
        za = ZA + 12 * (b & 1)
        o = []
        for B in (2, 3, 4):
            for a_ in range(2):
                if b + B <= 7: o.append((b + B, za + 4 * a_, TB8 + 4 * (2 * (B - 2) + a_), t8[(B, a_)]))
        for B in (4, 5, 6, 7):
            if b + B <= 7: o.append((b + B, za + 8, TB16 + 4 * (B - 4), t16[B]))
        return o
    xreads(0)
    spid = S.read(rd8(SPF, 280))
    xreads(1)
    t8 = {}; t16 = {}
    for B in (2, 3, 4):
        for a_ in range(2):
            t8[(B, a_)] = S.read(rd4(TB8 + 4 * (2 * (B - 2) + a_), 304 + 32 * (2 * a_) + 32 - 8 * B, 304 + 32 * (2 * a_ + 1) + 32 - 8 * B))
    for B in (4, 5, 6, 7):
        t16[B] = S.read(rd4(TB16 + 4 * (B - 4), 432 + 56 - 8 * B, 432 + 40 + 56 - 8 * B))
    zops(0)
    zops(1)
    for t in cvts(0): S.op(t)
    for b in range(6):
        if b + 2 < 6: xreads(b + 2)
        cv = cvts(b + 1) if b + 1 < 6 else []
        o = cls(b)
        per = -(-len(cv) // len(o))
        for (T, a_, b_, rid) in o:
            S.op(mf(AC + 4 * T, a_, b_, AC + 4 * T if T in touched else None), (rid,)); touched.add(T)
            for _ in range(per):
                if cv: S.op(cv.pop(0))
        if b + 2 < 6: zops(b + 2)
    S.emit()
    S = Stream(A, 12)
    dense(S, list(range(NA, 8)), touched, 64, 128, {'n': 0})
    S.emit()
    inject(i0)
    A('s_lshl_b32 s65, s5, 12')
    A('v_lshl_add_u32 v2, v1, 4, s65')
    for t in range(4): A('ds_write_b128 v2, v[%d:%d] offset:%d' % (AC + 4 * t, AC + 4 * t + 3, CRED + 1024 * t))
    for r in range(16): A('v_mov_b32 v%d, v%d' % (AC + r, AC + 16 + r))
    A(lJ + ':')
    stamp(A)
    A('v_xor_b32 v2, 0x4000, v2')
    A('v_lshlrev_b32 v3, 5, v6')
    A('v_lshl_add_u32 v3, v7, 3, v3')
    A('s_lshl_b32 s65, s4, 12')
    A('s_lshl_b32 s66, s7, 11')
    A('s_add_u32 s65, s65, s66')
    A('s_add_u32 s65, s65, 0x%x' % WS_B)
    A('s_waitcnt lgkmcnt(0)')
    A('s_barrier')
    for t in range(4): A('ds_read_b128 v[%d:%d], v2 offset:%d' % (64 + 4 * t, 67 + 4 * t, CRED + 1024 * t))
    for t in range(4):
        A('s_waitcnt lgkmcnt(%d)' % (3 - t))
        for r in range(4): A('v_add_f32 v%d, v%d, v%d' % (64 + 4 * t + r, 64 + 4 * t + r, AC + 4 * t + r))
        A('v_cvt_pk_bf16_f32 v%d, v%d, v%d' % (64 + 4 * t, 64 + 4 * t, 65 + 4 * t))
        A('v_cvt_pk_bf16_f32 v%d, v%d, v%d' % (65 + 4 * t, 66 + 4 * t, 67 + 4 * t))
        A('buffer_store_dwordx2 v[%d:%d], v3, s[56:59], s65 offen offset:%d%s' % (64 + 4 * t, 65 + 4 * t, 512 * t, ST))
    stamp(A)
    stamp_end(A, 0)
```

```python
from asmlib import *
import math
LOG2E = 1.4426950408889634
INV2PI = 1.0 / (2 * math.pi)

WS_H = 0
WS_E = 4 << 20
WS_G = WS_E + 65536
WS_C = 8 << 20
WS_B = 6 << 20
WS_END = 16 << 20

P = {n: 8 + 2 * i for i, n in enumerate(
    "x Lre Lim Bre Bim Cre Cim Aldt ADs Bu BAre BAim BBre BBim BCre BCim Bldt BDs gw out dbg ws".split())}

class VM:
    def __init__(self): self.q = []
    def issue(self, tag, n=1): self.q += [tag] * n
    def wait(self, A, tag, extra=''):
        idx = max(i for i, t in enumerate(self.q) if t == tag)
        n = len(self.q) - 1 - idx
        assert n <= 63
        A('s_waitcnt vmcnt(%d)%s' % (n, extra))

def load_kernargs(A):
    A('s_load_dwordx16 s[8:23], s[0:1], 0')
    A('s_load_dwordx16 s[24:39], s[0:1], 64')
    A('s_load_dwordx8 s[40:47], s[0:1], 128')
    A('s_load_dwordx4 s[48:51], s[0:1], 160')

def srd(A, d, base, nbytes):
    A('s_mov_b32 s%d, s%d' % (d, base))
    A('s_mov_b32 s%d, s%d' % (d + 1, base + 1))
    A('s_mov_b32 s%d, 0x%x' % (d + 2, nbytes))
    A('s_mov_b32 s%d, 0x00020000' % (d + 3))

def cexp(A, dre, dim, are, aim, k, t0, t1):
    if k == 1.0:
        A('v_exp_f32 v%d, v%d' % (t0, are))
        A('v_fract_f32 v%d, v%d' % (t1, aim))
    else:
        A('v_mul_f32 v%d, %s, v%d' % (t0, f2u(k), are))
        A('v_mul_f32 v%d, %s, v%d' % (t1, f2u(k), aim))
        A('v_exp_f32 v%d, v%d' % (t0, t0))
        A('v_fract_f32 v%d, v%d' % (t1, t1))
    A('v_cos_f32 v%d, v%d' % (dre, t1))
    A('v_sin_f32 v%d, v%d' % (dim, t1))
    A('v_mul_f32 v%d, v%d, v%d' % (dre, dre, t0))
    A('v_mul_f32 v%d, v%d, v%d' % (dim, dim, t0))

STAMP = {'on': False, 'n': 0}
WS_ST = 16 << 20
def stamp(A, real=False):
    if not STAMP['on']: return
    i = STAMP['n']; STAMP['n'] += 1
    assert i < 11
    A('%s s[%d:%d]' % ('s_memrealtime' if real else 's_memtime', 80 + 2 * i, 81 + 2 * i))
    A('s_waitcnt lgkmcnt(0)')
def stamp_begin(A):
    STAMP['n'] = 0
    stamp(A, True); stamp(A)
def stamp_end(A, kern):
    if not STAMP['on']: return
    A('s_waitcnt vmcnt(0)')
    stamp(A); stamp(A, True)
    A('s_mov_b64 exec, -1')
    A('v_mov_b32 v250, 0')
    for i in range(STAMP['n']): A('v_writelane_b32 v250, s%d, %d' % (80 + 2 * i, i))
    A('v_writelane_b32 v250, %d, 15' % STAMP['n'])
    srd(A, 76, P['ws'], 32 << 20)
    A('s_lshl_b32 s80, s2, 3')
    A('s_add_u32 s80, s80, s5')
    A('s_lshl_b32 s80, s80, 6')
    A('s_add_u32 s80, s80, 0x%x' % (WS_ST + kern * 256 * 8 * 64))
    A('v_mbcnt_lo_u32_b32 v251, -1, 0')
    A('v_lshlrev_b32 v251, 2, v251')
    A('s_mov_b64 exec, 0xffff')
    A('buffer_store_dword v250, v251, s[76:79], s80 offen')

XCH = 131072
G1_LDS = XCH + 15 * 512

def gen_g1(A, opts):
    vm = VM()
    ST = opts.get('st', '')
    ROT = int(opts.get('rot', 1))
    A('v_and_b32 v1, 63, v0')
    A('v_lshrrev_b32 v2, 6, v0')
    A('v_readfirstlane_b32 s5, v2')
    A('v_lshrrev_b32 v6, 5, v1')
    A('v_bfe_u32 v7, v1, 3, 2')
    A('v_lshl_add_u32 v7, v6, 4, v7')
    A('v_lshlrev_b32 v7, 10, v7')
    A('v_lshrrev_b32 v8, 4, v1')
    A('v_and_b32 v9, 7, v1')
    A('v_xor_b32 v8, v8, v9')
    A('v_lshl_or_b32 v2, v8, 4, v7')
    A('v_xor_b32 v3, 64, v2')
    A('v_add_u32 v3, 0x1000, v3')
    A('v_add_u32 v4, 0x2000, v2')
    A('v_add_u32 v5, 0x2000, v3')
    A('s_and_b32 s6, s5, 3')
    A('s_lshr_b32 s7, s5, 2')
    A('s_lshl_b32 s60, s4, 7')
    A('v_bfe_u32 v16, v1, 2, 1')
    A('v_bfe_u32 v17, v1, 3, 2')
    A('v_and_b32 v18, 3, v1')
    A('v_lshl_add_u32 v18, v16, 4, v18')
    A('v_lshl_add_u32 v18, v17, 2, v18')
    A('s_lshl_b32 s69, s7, 5')
    A('v_add_u32 v19, s69, v18')
    A('v_lshl_add_u32 v10, v19, 1, s60')
    A('s_lshl_b32 s62, s3, 7')
    A('s_lshl_b32 s63, s4, 4')
    A('s_add_u32 s62, s62, s63')
    A('s_lshl_b32 s63, s5, 1')
    A('s_add_u32 s62, s62, s63')
    A('s_lshl_b32 s63, s62, 10')
    A('v_lshlrev_b32 v14, 4, v1')
    A('v_add_u32 v15, s63, v14')
    A('s_and_b32 s76, s3, 1')
    A('s_lshl_b32 s76, s76, 2')
    A('s_add_u32 s76, s76, s4')
    A('s_lshl_b32 s76, s76, %d' % (7 if ROT else 10))
    A('s_lshr_b32 s64, s5, 1')
    A('s_add_u32 s64, s64, 1')
    A('s_lshl_b32 s64, s64, 7')
    A('s_add_u32 s64, s64, s76')
    A('s_and_b32 s64, s64, 0x380')
    A('s_lshl_b32 s65, s4, 16')
    A('s_add_u32 s64, s64, s65')
    A('v_lshl_add_u32 v249, v1, 10, s64')
    A('s_waitcnt lgkmcnt(0)')
    A('s_bitcmp1_b32 s5, 0')
    A('s_cselect_b64 s[52:53], s[%d:%d], s[%d:%d]' % (P['Bim'], P['Bim'] + 1, P['Bre'], P['Bre'] + 1))
    if int(opts.get('pf', 0)):
        A('global_load_dword v250, v249, s[52:53]')
        vm.issue('pf')
    A('s_lshl_b32 s64, s4, 6')
    A('s_lshr_b32 s65, s6, 1')
    A('s_lshl_b32 s65, s65, 5')
    A('s_add_u32 s64, s64, s65')
    A('s_lshl_b32 s65, s3, 7')
    A('s_lshl_b32 s66, s6, 5')
    A('s_add_u32 s65, s65, s66')
    A('s_mov_b32 s54, 0x80000')
    A('s_cmp_eq_u32 s7, 0')
    A('s_cselect_b64 s[52:53], s[%d:%d], s[52:53]' % (P['x'], P['x'] + 1))
    A('s_cselect_b32 s54, 0x200000, s54')
    A('s_cselect_b32 s64, s65, s64')
    A('s_mov_b32 s55, 0x00020000')
    A('s_lshl_b32 s64, s64, 10')
    A('s_lshl_b32 s66, s5, 12')
    def dma1(kc, i):
        if i == 0:
            A('s_add_u32 s65, s76, %d' % (kc * 128))
            A('s_and_b32 s65, s65, 0x380')
            A('s_add_u32 s65, s65, s64')
        A('s_add_u32 m0, s66, %d' % ((kc & 3) * 32768 + i * 1024))
        A('buffer_load_dwordx4 v%d, s[52:55], s65 offen lds' % (2 + i))
        vm.issue('d%d' % kc)
    def dma(kc):
        for i in range(4): dma1(kc, i)
    PRE = int(opts.get('pre', 2))
    def l_par():
        A('global_load_ushort v20, v10, s[%d:%d]' % (P['Lre'], P['Lre'] + 1))
        A('global_load_ushort v21, v10, s[%d:%d]' % (P['Lim'], P['Lim'] + 1))
        A('global_load_ushort v22, v10, s[%d:%d]' % (P['Aldt'], P['Aldt'] + 1))
        vm.issue('par', 3)
    def l_gate():
        A('global_load_dwordx4 v[28:31], v14, s[%d:%d]' % (P['gw'], P['gw'] + 1))
        A('global_load_dwordx4 v[32:35], v15, s[%d:%d]' % (P['x'], P['x'] + 1))
        A('global_load_dwordx4 v[36:39], v15, s[%d:%d] offset:1024' % (P['x'], P['x'] + 1))
        vm.issue('gate', 3)
    for ch in opts.get('ord', '0b1pg'):
        if ch == 'b': A('s_barrier')
        elif ch == 'p': l_par()
        elif ch == 'g': l_gate()
        else: dma(int(ch)); PRE = int(ch) + 1
    srd(A, 56, P['ws'], WS_END)
    dq = [(k, i) for k in range(PRE, 4) for i in range(4)]
    A('v_mov_b32 v16, 0')
    A('v_mov_b32 v17, 0')
    A('v_lshlrev_b32 v18, 3, v0')
    A('v_add_u32 v18, 0x%x, v18' % XCH)
    A('ds_write_b64 v18, v[16:17]')
    A('v_and_b32 v16, 31, v1')
    A('v_bfe_u32 v17, v1, 1, 3')
    A('v_xor_b32 v17, v17, v6')
    A('v_lshlrev_b32 v16, 7, v16')
    A('v_lshl_or_b32 v16, v17, 4, v16')
    A('s_lshl_b32 s67, s6, 12')
    A('s_lshl_b32 s68, s7, 13')
    A('s_add_u32 s68, s68, 0x4000')
    for ks in range(4):
        A('v_xor_b32 v17, %d, v16' % (ks * 32))
        A('v_add_u32 v%d, s67, v17' % (40 + ks))
        A('v_add_u32 v%d, s68, v17' % (44 + ks))
    stamp(A)
    AM = A
    SH = []
    A = SH.append
    A(('vm', 'par'))
    A('v_lshlrev_b32 v20, 16, v20')
    A('v_lshlrev_b32 v21, 16, v21')
    A('v_lshlrev_b32 v22, 16, v22')
    A('v_mul_f32 v22, %s, v22' % f2u(LOG2E))
    A('v_exp_f32 v22, v22')
    A('v_cvt_pk_bf16_f32 v22, v22, v22')
    A('v_lshlrev_b32 v22, 16, v22')
    A('v_mul_f32 v48, v22, v20')
    A('v_mul_f32 v49, v22, v21')
    A('v_mul_f32 v48, %s, v48' % f2u(LOG2E))
    A('v_mul_f32 v49, %s, v49' % f2u(-INV2PI))
    cexp(A, 52, 53, 48, 49, 1.0, 16, 17)
    cexp(A, 54, 55, 48, 49, 16.0, 50, 51)
    A('v_mul_f32 v16, v20, v20')
    A('v_fmac_f32 v16, v21, v21')
    A('v_rcp_f32 v16, v16')
    A('v_add_f32 v17, -1.0, v52')
    A('v_mul_f32 v56, v17, v20')
    A('v_mul_f32 v57, v17, v21')
    A('v_fma_f32 v56, -v53, v21, v56')
    A('v_fmac_f32 v57, v53, v20')
    A('v_add_f32 v16, v16, v16')
    A('v_mul_f32 v56, v56, v16')
    A('v_mul_f32 v57, v57, v16')
    A(('vm', 'gate'))
    A('v_mov_b32 v62, 0')
    A('v_mov_b32 v63, 0')
    for e in range(4):
        A('v_dot2c_f32_bf16 v62, v%d, v%d' % (32 + e, 28 + e))
        A('v_dot2c_f32_bf16 v63, v%d, v%d' % (36 + e, 28 + e))
    for sh in (1, 2, 4, 8):
        A('v_add_f32_dpp v62, v62, v62 row_shr:%d row_mask:0xf bank_mask:0xf bound_ctrl:0' % sh)
        A('v_add_f32_dpp v63, v63, v63 row_shr:%d row_mask:0xf bank_mask:0xf bound_ctrl:0' % sh)
    A('v_add_f32_dpp v62, v62, v62 row_bcast:15 row_mask:0xa bank_mask:0xf')
    A('v_add_f32_dpp v63, v63, v63 row_bcast:15 row_mask:0xa bank_mask:0xf')
    A('v_add_f32_dpp v62, v62, v62 row_bcast:31 row_mask:0xc bank_mask:0xf')
    A('v_add_f32_dpp v63, v63, v63 row_bcast:31 row_mask:0xc bank_mask:0xf')
    A('v_cvt_pk_bf16_f32 v62, v62, v63')
    A('v_and_b32 v63, 0xffff0000, v62')
    A('v_lshlrev_b32 v62, 16, v62')
    for r in (62, 63):
        A('v_mul_f32 v%d, %s, v%d' % (r, f2u(-LOG2E), r))
    for r in (62, 63):
        A('v_exp_f32 v%d, v%d' % (r, r))
    for r in (62, 63):
        A('v_add_f32 v%d, 1.0, v%d' % (r, r))
    for r in (62, 63):
        A('v_rcp_f32 v%d, v%d' % (r, r))
    A('v_cvt_pk_bf16_f32 v62, v62, v63')
    A('v_and_b32 v63, 0xffff0000, v62')
    A('v_lshlrev_b32 v62, 16, v62')
    A('v_sub_f32 v28, 1.0, v62')
    A('v_sub_f32 v29, 1.0, v63')
    A('v_cvt_pk_bf16_f32 v62, v62, v28')
    A('v_cvt_pk_bf16_f32 v63, v63, v29')
    A('s_lshl_b32 s63, s62, 2')
    A('s_add_u32 s63, s63, 0x%x' % WS_G)
    A('v_mov_b32 v28, 0')
    A(['s_mov_b32 exec_lo, 0', 's_mov_b32 exec_hi, 0x80000000',
       'buffer_store_dwordx2 v[62:63], v28, s[56:59], s63 offen' + ST, 's_mov_b64 exec, -1'])
    A = AM
    ACR, ACI, FR = 64, 80, 96
    lg = VM()
    def E(t):
        if isinstance(t, list):
            for q in t: E(q)
        elif isinstance(t, tuple):
            if t[0] == 'vm': vm.wait(A, t[1])
            else: lgw(t[1])
        else:
            A(t)
            if t.startswith('ds_'): lg.issue('bp')
            if t.startswith('buffer_store'): vm.issue('st')
    lgd = [0]
    def lgw(tag):
        idx = max(i for i, t in enumerate(lg.q) if t == tag)
        if idx < lgd[0]: return
        n = len(lg.q) - 1 - idx
        n = min(n, 15)
        A('s_waitcnt lgkmcnt(%d)' % n); lgd[0] = len(lg.q) - n
    def sh(n):
        for _ in range(n):
            if SH: E(SH.pop(0))
    def reads(kc):
        off = (kc & 1) * 32768
        r = []
        for ks in range(4):
            f = FR + (kc & 1) * 48 + ks * 12
            r.append(('ds_read_b128 v[%d:%d], v%d offset:%d' % (f, f + 3, 40 + ks, off), 'r%d_%d' % (kc, ks)))
            r.append(('ds_read_b128 v[%d:%d], v%d offset:%d' % (f + 4, f + 7, 44 + ks, off), 'r%d_%d' % (kc, ks)))
            r.append(('ds_read_b128 v[%d:%d], v%d offset:%d' % (f + 8, f + 11, 44 + ks, off + 4096), 'r%d_%d' % (kc, ks)))
        return r
    SK = int(opts.get('sk', 9)); NS = int(opts.get('ns', 4)); SW = int(opts.get('sw', 1))
    A('s_waitcnt lgkmcnt(0)')
    if SW < 0: sh(999)
    vm.wait(A, 'd0')
    A('s_barrier')
    stamp(A)
    for t, tag in reads(0): A(t); lg.issue(tag)
    SK = int(opts.get('sk', 9)); NS = int(opts.get('ns', 4)); SW = int(opts.get('sw', 1))
    for kc in range(8):
        rd = []
        for ks in range(4):
            f = FR + (kc & 1) * 48 + ks * 12
            first = (kc == 0 and ks == 0)
            lgw('r%d_%d' % (kc, ks))
            for ac, o in ((ACR, 4), (ACI, 8)):
                A('v_mfma_f32_32x32x16_bf16 v[%d:%d], v[%d:%d], v[%d:%d], %s' % (ac, ac + 15, f, f + 3, f + o, f + o + 3, '0' if first else v(ac, 16)))
                for _ in range(2):
                    if rd:
                        t, tag = rd.pop(0); A(t); lg.issue(tag)
                if dq: dma1(*dq.pop(0))
                if kc >= SK: sh(NS)
            if ks == 0 and kc < 7:
                if kc & 1:
                    for r in range(40, 48): A('v_xor_b32 v%d, 0x10000, v%d' % (r, r))
                while dq and dq[0][0] <= kc + 1: dma1(*dq.pop(0))
                if kc == SW: sh(999)
                vm.wait(A, 'd%d' % (kc + 1))
                A('s_barrier')
                if kc in (1, 3): stamp(A)
                if 1 <= kc <= 4: dq += [(kc + 3, i) for i in range(4)]
                rd = reads(kc + 1)
        assert not rd
    sh(999)
    stamp(A)
    A('v_and_b32 v16, 31, v1')
    A('v_lshlrev_b32 v16, 3, v16')
    A('v_lshl_add_u32 v16, v6, 9, v16')
    A('s_lshl_b32 s63, s6, 10')
    A('s_lshl_b32 s69, s7, 8')
    A('s_add_u32 s63, s63, s69')
    A('s_add_u32 s63, s63, 0x%x' % XCH)
    A('v_add_u32 v18, s63, v16')
    L, Q, K, U = 52, 54, 56, 112
    def kap(j):
        r, i, o = ACR + (j & ~1), ACI + (j & ~1), j & 1
        d = U + 2 * j
        return ['v_pk_mul_f32 v[%d:%d], v[%d:%d], v[%d:%d] op_sel:[%d,0] op_sel_hi:[%d,1]' % (d, d + 1, r, r + 1, K, K + 1, o, o),
                'v_pk_fma_f32 v[%d:%d], v[%d:%d], v[%d:%d], v[%d:%d] op_sel:[%d,1,0] op_sel_hi:[%d,0,1] neg_hi:[0,1,0]' % (d, d + 1, i, i + 1, K, K + 1, d, d + 1, o, o)]
    def mac(d, m, z, c):
        return ['v_pk_fma_f32 v[%d:%d], v[%d:%d], v[%d:%d], v[%d:%d] op_sel:[0,0,0] op_sel_hi:[0,1,1]' % (d, d + 1, m, m + 1, z, z + 1, c, c + 1),
                'v_pk_fma_f32 v[%d:%d], v[%d:%d], v[%d:%d], v[%d:%d] op_sel:[1,1,0] op_sel_hi:[1,0,1] neg_lo:[1,0,0]' % (d, d + 1, m, m + 1, z, z + 1, d, d + 1)]
    k0, k1 = kap(0), kap(1)
    for t in (k0[0], k1[0], k0[1], k1[1]): A(t)
    e = U
    for j in range(1, 16):
        n = 20 if (j & 1) else 22
        kk = kap(j + 1) if j < 15 else [None, None]
        m = mac(n, L, e, U + 2 * j)
        for t in (kk[0], m[0], kk[1], m[1]):
            if t: A(t)
        e = n
    A('ds_write_b64 v18, v[20:21] offset:%d' % (7 * 512))
    A('s_waitcnt lgkmcnt(0)')
    A('s_barrier')
    for m in range(7):
        A('ds_read_b64 v[%d:%d], v18 offset:%d' % (24 + 2 * m, 25 + 2 * m, m * 512))
    A('s_lshl_b32 s63, s4, 6')
    A('v_add_u32 v19, s63, v19')
    A('v_lshlrev_b32 v17, 4, v19')
    A('v_lshl_add_u32 v17, v6, 14, v17')
    A('s_lshl_b32 s63, s3, 18')
    A('s_lshr_b32 s69, s6, 1')
    A('s_lshl_b32 s69, s69, 17')
    A('s_add_u32 s63, s63, s69')
    A('s_and_b32 s69, s6, 1')
    A('s_lshl_b32 s69, s69, 15')
    A('s_add_u32 s72, s63, s69')
    A('s_add_u32 s73, s72, 0x2000')
    A('s_add_u32 s74, s72, 0x10000')
    A('s_add_u32 s75, s72, 0x12000')
    for m in range(1, 7):
        A('s_waitcnt lgkmcnt(%d)' % (6 - m))
        for t in mac(24 + 2 * m, Q, 22 + 2 * m, 24 + 2 * m): A(t)
    z = 36
    for j in range(16):
        c = U + 2 * j
        m = mac(c, L, z, c)
        A(m[0])
        if j >= 2 and not (j & 1): A('v_cvt_pk_bf16_f32 v%d, v%d, v%d' % (96 + j // 2 - 1, c - 4, c - 2))
        A(m[1])
        if j >= 2 and not (j & 1): A('v_cvt_pk_bf16_f32 v%d, v%d, v%d' % (104 + j // 2 - 1, c - 3, c - 1))
        z = c
        if j == 8:
            A('buffer_store_dwordx4 v[96:99], v17, s[56:59], s72 offen' + ST)
            A('buffer_store_dwordx4 v[104:107], v17, s[56:59], s74 offen' + ST)
    A('v_cvt_pk_bf16_f32 v103, v%d, v%d' % (U + 28, U + 30))
    A('v_cvt_pk_bf16_f32 v111, v%d, v%d' % (U + 29, U + 31))
    A('buffer_store_dwordx4 v[100:103], v17, s[56:59], s73 offen' + ST)
    A('buffer_store_dwordx4 v[108:111], v17, s[56:59], s75 offen' + ST)
    l = A.label('noE')
    A('s_cmp_lg_u32 s6, 3')
    A('s_cbranch_scc1 ' + l)
    A('v_cvt_pk_bf16_f32 v20, v%d, v%d' % (U + 30, U + 31))
    A('v_lshlrev_b32 v17, 4, v19')
    A('s_lshr_b32 s63, s3, 2')
    A('s_lshl_b32 s63, s63, 13')
    A('s_and_b32 s69, s3, 3')
    A('s_lshl_b32 s69, s69, 2')
    A('s_add_u32 s63, s63, s69')
    A('s_add_u32 s63, s63, 0x%x' % WS_E)
    A('s_mov_b32 exec_lo, 0')
    A('buffer_store_dword v20, v17, s[56:59], s63 offen' + ST)
    A(l + ':')
    stamp(A)
    stamp_end(A, 0)
    A('s_endpgm')
```

```python
from asmlib import *
from g1 import *

RED = 131072
G2_LDS = RED + 32768

def gen_g2(A, opts):
    NH0, NH1, NH2 = [int(c) for c in opts.get('nh', '234')]
    GB = int(opts.get('gb', 3)); EP = int(opts.get('ep', 8))
    vm = VM()
    end = A.label('end2')
    load_kernargs(A)
    A('s_cmp_ge_u32 s2, 256')
    A('s_cbranch_scc1 ' + end)
    stamp_begin(A)
    A('s_and_b32 s3, s2, 7')
    A('s_lshl_b32 s3, s3, 2')
    A('s_lshr_b32 s4, s2, 6')
    A('s_add_u32 s3, s3, s4')
    A('s_bfe_u32 s4, s2, 0x30003')
    A('s_lshr_b32 s6, s3, 1')
    A('v_and_b32 v1, 63, v0')
    A('v_lshrrev_b32 v2, 6, v0')
    A('v_readfirstlane_b32 s5, v2')
    A('v_and_b32 v3, 0x1e3, v0')
    A('v_bfe_u32 v2, v0, 2, 2')
    A('v_lshl_or_b32 v3, v2, 3, v3')
    A('v_bfe_u32 v2, v0, 4, 1')
    A('v_lshl_or_b32 v3, v2, 2, v3')
    A('v_lshlrev_b32 v2, 1, v3')
    A('v_lshlrev_b32 v3, 4, v3')
    A('v_lshlrev_b32 v4, 4, v1')
    A('s_lshl_b32 s60, s3, 17')
    A('s_and_b32 s7, s5, 1')
    A('s_bfe_u32 s75, s5, 0x10001')
    A('s_lshr_b32 s61, s5, 2')
    A('s_lshl_b32 s62, s4, 1')
    A('s_add_u32 s62, s62, s7')
    A('s_lshl_b32 s63, s62, 16')
    A('s_lshl_b32 s64, s61, 13')
    A('s_add_u32 s63, s63, s64')
    A('s_lshl_b32 s64, s75, 14')
    A('s_add_u32 s63, s63, s64')
    if int(opts.get('ncp', 1)) == 8:
        A('s_and_b32 s64, s2, 7')
        A('s_lshl_b32 s64, s64, 20')
        A('s_add_u32 s63, s63, s64')
    A('s_add_u32 s63, s63, 0x%x' % WS_C)
    A('s_add_u32 s72, s63, 0x8000')
    A('s_waitcnt lgkmcnt(0)')
    srd(A, 52, P['ws'], WS_END)
    A('global_load_ushort v8, v2, s[%d:%d]' % (P['Lre'], P['Lre'] + 1))
    A('global_load_ushort v9, v2, s[%d:%d]' % (P['Lim'], P['Lim'] + 1))
    A('global_load_ushort v10, v2, s[%d:%d]' % (P['Aldt'], P['Aldt'] + 1))
    vm.issue('par', 3)
    EB = 12
    l = A.label('noE')
    for q in range(4):
        A('s_cmp_le_u32 s6, %d' % (4 * q))
        A('s_cbranch_scc1 ' + l)
        A('s_mov_b32 s64, 0x%x' % (WS_E + q * 8192))
        A('buffer_load_dwordx4 v[%d:%d], v3, s[52:55], s64 offen' % (EB + 4 * q, EB + 4 * q + 3))
    A(l + ':')
    vm.issue('E')
    HB = 64
    CB = 128
    XF, BF, GF, DS = 192, 200, 204, 212
    def ldH(o):
        A('s_add_u32 s64, s60, %d' % (o * 8192))
        A('s_add_u32 s65, s60, %d' % (o * 8192 + 65536))
        A('buffer_load_dwordx4 v[%d:%d], v3, s[52:55], s64 offen' % (HB + 8 * o, HB + 8 * o + 3))
        A('buffer_load_dwordx4 v[%d:%d], v3, s[52:55], s65 offen' % (HB + 8 * o + 4, HB + 8 * o + 7))
        vm.issue('H%d' % o, 2)
    def ldC(c):
        s_, j = c >> 1, c & 1
        sr = 72 if j else 63
        if s_ == 4: A('s_add_u32 s%d, s%d, 4096' % (sr, sr))
        A('buffer_load_dwordx4 v[%d:%d], v4, s[52:55], s%d offen offset:%d' % (CB + 4 * c, CB + 4 * c + 3, sr, (s_ % 4) * 1024))
        vm.issue('C%d' % c)
    def ldEpi():
        l1, l2 = A.label('eB'), A.label('eJ')
        A('s_cmp_lg_u32 s61, 0')
        A('s_cbranch_scc1 ' + l1)
        A('global_load_dwordx4 v[%d:%d], v220, s[%d:%d]' % (XF, XF + 3, P['x'], P['x'] + 1))
        A('global_load_dwordx4 v[%d:%d], v221, s[%d:%d]' % (XF + 4, XF + 7, P['x'], P['x'] + 1))
        A('global_load_short_d16_hi v%d, v224, s[%d:%d]' % (GF, P['ADs'], P['ADs'] + 1))
        A('global_load_short_d16_hi v%d, v224, s[%d:%d] offset:32' % (GF + 1, P['ADs'], P['ADs'] + 1))
        A('s_branch ' + l2)
        A(l1 + ':')
        A('s_add_u32 s68, s73, 0x10000')
        A('buffer_load_dwordx4 v[%d:%d], v222, s[52:55], s73 offen' % (XF, XF + 3))
        A('buffer_load_dwordx4 v[%d:%d], v222, s[52:55], s68 offen' % (XF + 4, XF + 7))
        A('buffer_load_dword v%d, v223, s[52:55], s74 offen' % GF)
        A('buffer_load_dword v%d, v223, s[52:55], s74 offen offset:64' % (GF + 1))
        A(l2 + ':')
        vm.issue('epi', 4)
    for o in range(NH0): ldH(o)
    A('v_and_b32 v5, 15, v1')
    A('v_lshrrev_b32 v6, 4, v1')
    A('s_lshl_b32 s66, s3, 6')
    A('s_lshl_b32 s67, s75, 5')
    A('s_add_u32 s66, s66, s67')
    A('s_lshl_b32 s67, s62, 5')
    A('s_lshl_b32 s68, s66, 10')
    A('s_lshl_b32 s69, s67, 1')
    A('s_add_u32 s68, s68, s69')
    A('v_lshlrev_b32 v7, 10, v5')
    A('v_lshl_add_u32 v7, v6, 4, v7')
    A('v_add_u32 v220, s68, v7')
    A('v_add_u32 v221, 0x4000, v220')
    A('s_lshl_b32 s68, s67, 12')
    A('s_lshl_b32 s69, s66, 1')
    A('s_add_u32 s68, s68, s69')
    A('s_add_u32 s73, s68, 0x%x' % WS_B)
    A('v_lshlrev_b32 v7, 12, v5')
    A('v_lshl_add_u32 v222, v6, 4, v7')
    A('s_lshl_b32 s68, s66, 2')
    A('s_add_u32 s74, s68, 0x%x' % WS_G)
    A('v_lshlrev_b32 v223, 2, v5')
    A('v_add_u32 v7, s67, v5')
    A('v_lshlrev_b32 v224, 1, v7')
    srd(A, 56, P['out'], 4194304)
    A('v_lshlrev_b32 v213, 11, v5')
    A('v_lshl_add_u32 v213, v6, 4, v213')
    A('s_lshl_b32 s70, s66, 11')
    A('s_lshl_b32 s71, s67, 2')
    A('s_add_u32 s70, s70, s71')
    A('v_and_b32 v7, 7, v0')
    A('v_and_b32 v28, 255, v0')
    A('v_lshlrev_b32 v28, 7, v28')
    A('v_lshl_or_b32 v28, v7, 4, v28')
    A('v_lshl_or_b32 v28, s61, 16, v28')
    A('v_lshrrev_b32 v7, 2, v1')
    A('v_and_b32 v11, 7, v7')
    A('v_bfe_u32 v29, v1, 1, 1')
    A('v_xor_b32 v11, v11, v29')
    A('v_lshlrev_b32 v7, 7, v7')
    A('v_lshl_or_b32 v7, v11, 4, v7')
    A('v_and_b32 v11, 1, v1')
    A('v_lshl_or_b32 v7, v11, 3, v7')
    A('s_lshl_b32 s64, s61, 16')
    A('s_mul_i32 s65, s75, 0x8040')
    A('s_add_u32 s64, s64, s65')
    A('v_xor_b32 v7, s64, v7')
    A('s_and_b32 s64, s5, 3')
    A('s_lshl_b32 s64, s64, 13')
    A('s_add_u32 s64, s64, 0x%x' % RED)
    A('v_add_u32 v218, s64, v4')
    for t in range(4):
        A('v_xor_b32 v%d, %d, v7' % (214 + t, 32 * t))
    stamp(A)
    vm.wait(A, 'E')
    A('v_lshlrev_b32 v8, 16, v8')
    A('v_lshlrev_b32 v9, 16, v9')
    A('v_lshlrev_b32 v10, 16, v10')
    A('v_mul_f32 v10, %s, v10' % f2u(LOG2E))
    A('v_exp_f32 v10, v10')
    A('v_cvt_pk_bf16_f32 v10, v10, v10')
    A('v_lshlrev_b32 v10, 16, v10')
    A('v_mul_f32 v8, v10, v8')
    A('v_mul_f32 v9, v10, v9')
    A('v_mul_f32 v8, %s, v8' % f2u(LOG2E))
    A('v_mul_f32 v9, %s, v9' % f2u(-INV2PI))
    PR, PI = 32, 40
    LO, HI = 'op_sel_hi:[1,0%s]', 'op_sel:[0,1%s]'
    def pk(op, d, a_, b_, c_, sel, swap=False, neg=''):
        t = ',0' if c_ is not None else ''; u = ',1' if c_ is not None else ''
        m = ' op_sel:[%d,%d%s] op_sel_hi:[%d,%d%s]' % (1 if swap else 0, sel, t, 0 if swap else 1, sel, u)
        if 'l' in neg: m += ' neg_lo:[1,0%s]' % t
        if 'h' in neg: m += ' neg_hi:[1,0%s]' % t
        A('v_pk_%s_f32 v[%d:%d], v[%d:%d], v[%d:%d]%s%s' % (op, d, d + 1, a_, a_ + 1, b_, b_ + 1, '' if c_ is None else ', v[%d:%d]' % (c_, c_ + 1), m))
    cexp(A, 48, 49, 8, 9, 128.0, 2, 7)
    cexp(A, PR, PI, 8, 9, 1.0, 2, 7)
    for o in range(NH0, NH1): ldH(o)
    A('v_mov_b32 v50, 0')
    A('v_mov_b32 v51, 0')
    A('v_mul_f32 v%d, v%d, v%d' % (PR + 1, PR, PR))
    A('v_mul_f32 v%d, v%d, v%d' % (PI + 1, PR, PI))
    A('v_fma_f32 v%d, -v%d, v%d, v%d' % (PR + 1, PI, PI, PR + 1))
    A('v_add_f32 v%d, v%d, v%d' % (PI + 1, PI + 1, PI + 1))
    def pw2(d, x, m):
        pk('mul', PR + d, PR + x, PR + m, None, 1)
        pk('mul', PI + d, PR + x, PI + m, None, 1)
        pk('fma', PR + d, PI + x, PI + m, PR + d, 1, neg='lh')
        pk('fma', PI + d, PI + x, PR + m, PI + d, 1)
    pw2(2, 0, 0); pw2(4, 0, 2); pw2(6, 2, 2)
    l = A.label('Sdone')
    for c in range(15):
        A('s_cmp_le_u32 s6, %d' % c)
        A('s_cbranch_scc1 ' + l)
        T = 54 + 2 * (c & 1)
        A('v_lshlrev_b32 v%d, 16, v%d' % (T, EB + c))
        A('v_and_b32 v%d, 0xffff0000, v%d' % (T + 1, EB + c))
        pk('fma', T, 50, 48, T, 0)
        pk('fma', 50, 50, 48, T, 1, swap=True, neg='l')
    A(l + ':')
    for o in range(NH1, NH2): ldH(o)
    l = A.label('even')
    A('s_bitcmp0_b32 s3, 0')
    A('s_cbranch_scc1 ' + l)
    cexp(A, 48, 49, 8, 9, 64.0, 2, 7)
    pk('mul', 52, 50, 48, None, 0)
    pk('fma', 50, 50, 48, 52, 1, swap=True, neg='l')
    A(l + ':')
    stamp(A)
    def gbar(grp):
        l = A.label('gb')
        A('s_cmp_lg_u32 s61, %d' % grp)
        A('s_cbranch_scc1 ' + l)
        A('s_barrier')
        A(l + ':')
    z = 50
    rest = []
    for o in range(NH2, 8): rest += [lambda o=o: ldH(o), lambda: None]
    rest += [lambda s_=s_: ldC(s_) for s_ in range(EP)] + [ldEpi] + [lambda s_=s_: ldC(s_) for s_ in range(EP, 16)]
    for o in range(8):
        if o == GB: gbar(1)
        vm.wait(A, 'H%d' % o)
        for _ in range(2 if o < 6 else 3):
            if rest: rest.pop(0)()
        hr, hi = HB + 8 * o, HB + 8 * o + 4
        zn = 102 - z
        for q in range(4):
            T = 54 + 4 * (q & 1)
            A('v_lshlrev_b32 v%d, 16, v%d' % (T, hr + q))
            A('v_and_b32 v%d, 0xffff0000, v%d' % (T + 1, hr + q))
            A('v_lshlrev_b32 v%d, 16, v%d' % (T + 2, hi + q))
            A('v_and_b32 v%d, 0xffff0000, v%d' % (T + 3, hi + q))
            pk('fma', T, PR + 2 * q, z, T, 0)
            pk('fma', T + 2, PR + 2 * q, z, T + 2, 1)
            if o < 7 and q == 0: pk('mul', zn, z, PR + 6, None, 1)
            if o < 7 and q == 1: pk('fma', zn, z, PI + 6, zn, 1, swap=True, neg='l')
            if q == 2: A('v_xor_b32 v2, %d, v28' % (16 * o))
            pk('fma', T, PI + 2 * q, z, T, 1, neg='lh')
            pk('fma', T + 2, PI + 2 * q, z, T + 2, 0)
            A('v_cvt_pk_bf16_f32 v%d, v%d, v%d' % (hr + q, T, T + 1))
            A('v_cvt_pk_bf16_f32 v%d, v%d, v%d' % (hi + q, T + 2, T + 3))
        A('ds_write_b128 v2, v[%d:%d]' % (hr, hr + 3))
        A('ds_write_b128 v2, v[%d:%d] offset:32768' % (hi, hi + 3))
        z = zn
    stamp(A)
    for _ in range(3): rest.pop(0)()
    AC = 32
    FR = 64
    SEL, OB = 96, 104
    lB, lJ = A.label('mB'), A.label('mJ')
    A('s_cmp_lg_u32 s61, 0')
    A('s_cbranch_scc1 ' + lB)
    for r in range(32): A('v_mov_b32 v%d, 0' % (AC + r))
    A('s_waitcnt lgkmcnt(0)')
    A('s_barrier')
    A('s_branch ' + lJ)
    A(lB + ':')
    A('s_waitcnt lgkmcnt(0)')
    A('s_barrier')
    for k in range(8): A('ds_read_b128 v[%d:%d], v218 offset:%d' % (AC + 4 * k, AC + 4 * k + 3, 1024 * k))
    A(lJ + ':')
    stamp(A)
    def rd(s_, u):
        f = FR + (s_ & 1) * 16
        A('ds_read_b64_tr_b16 v[%d:%d], v%d offset:%d' % (f + 4 * u, f + 4 * u + 1, 214 + u, s_ * 4096))
        A('ds_read_b64_tr_b16 v[%d:%d], v%d offset:%d' % (f + 4 * u + 2, f + 4 * u + 3, 214 + u, s_ * 4096 + 2048))
    sh = ['v_lshrrev_b32 v2, 1, v5', 'v_lshlrev_b32 v7, 2, v6', 'v_sub_u32 v2, v2, v7', 'v_and_b32 v11, 1, v5', 'v_cmp_eq_u32 vcc, 0, v11']
    for i in range(2):
        sh += ['v_lshrrev_b32 v11, 16, v%d' % (GF + i), 'v_and_b32 v12, 0xffff0000, v%d' % (GF + i),
               'v_cndmask_b32 v%d, v12, v11, vcc' % (13 + i), 'v_lshlrev_b32 v%d, 16, v%d' % (GF + i, GF + i)]
    for i in range(2):
        for r in range(4):
            sh += ['v_cmp_eq_u32 vcc, %d, v2' % (r - 8 * i), None, 'v_cndmask_b32 v%d, 0, v%d, vcc' % (SEL + 4 * i + r, 13 + i)]
    for u in (2, 3): rd(0, u)
    A('s_waitcnt lgkmcnt(8)')
    for u in (0, 1): rd(0, u)
    for s_ in range(8):
        f = FR + (s_ & 1) * 16
        for _ in range(2):
            if rest: rest.pop(0)()
        vm.wait(A, 'C%d' % (2 * s_ + 1))
        if s_ == 3: vm.wait(A, 'epi')
        for n_, u in enumerate((2, 3, 0, 1)):
            if s_ < 7:
                rd(s_ + 1, u)
                A('s_waitcnt lgkmcnt(8)')
            else:
                A('s_waitcnt lgkmcnt(%d)' % (6 - 2 * n_))
            for j in range(2):
                d = AC + 16 * j + 4 * u
                A('v_mfma_f32_16x16x32_bf16 v[%d:%d], v[%d:%d], v[%d:%d], v[%d:%d]' % (
                    d, d + 3, CB + 8 * s_ + 4 * j, CB + 8 * s_ + 4 * j + 3, f + 4 * u, f + 4 * u + 3, d, d + 3))
                if s_ >= 3:
                    for _ in range(1 + j):
                        if sh:
                            t = sh.pop(0)
                            if t is None: break
                            A(t)
    assert not rest and not sh
    stamp(A)
    lB = A.label('fB')
    A('s_cmp_lg_u32 s61, 0')
    A('s_cbranch_scc1 ' + lB)
    for j in range(2):
        for i in range(2):
            d = AC + 16 * j + 4 * i
            A('v_mfma_f32_16x16x32_bf16 v[%d:%d], v[%d:%d], v[%d:%d], v[%d:%d]' % (d, d + 3, SEL + 4 * j, SEL + 4 * j + 3, XF + 4 * i, XF + 4 * i + 3, d, d + 3))
    for k in (2, 3, 6, 7, 0, 1, 4, 5): A('ds_write_b128 v218, v[%d:%d] offset:%d' % (AC + 4 * k, AC + 4 * k + 3, 1024 * k))
    A('s_waitcnt lgkmcnt(0)')
    A('s_barrier')
    if STAMP['on']:
        n0 = STAMP['n']; stamp(A); stamp_end(A, 1); STAMP['n'] = n0
    A('s_endpgm')
    A(lB + ':')
    for j in range(2):
        for i in range(2):
            d = OB + 8 * j + 4 * i
            A('v_mfma_f32_16x16x32_bf16 v[%d:%d], v[%d:%d], v[%d:%d], 0' % (d, d + 3, XF + 4 * j, XF + 4 * j + 3, SEL + 4 * i, SEL + 4 * i + 3))
            k = 4 * j + 2 + i
            A('ds_write_b128 v218, v[%d:%d] offset:%d' % (AC + 4 * k, AC + 4 * k + 3, 1024 * (2 * j + i)))
    A('v_xor_b32 v7, 0x4000, v218')
    A('s_add_u32 s71, s70, 0x8000')
    A('s_waitcnt lgkmcnt(0)')
    A('s_barrier')
    for k in range(4): A('ds_read_b128 v[%d:%d], v7 offset:%d' % (64 + 4 * k, 67 + 4 * k, 1024 * k))
    for j in range(2):
        for i in range(2):
            k = 2 * j + i
            A('s_waitcnt lgkmcnt(%d)' % (3 - k))
            for r in range(4): A('v_add_f32 v%d, v%d, v%d' % (64 + 4 * k + r, 64 + 4 * k + r, AC + 16 * j + 4 * i + r))
            for r in range(4): A('v_fmac_f32 v%d, v%d, v%d' % (OB + 4 * k + r, GF + i, 64 + 4 * k + r))
            A('buffer_store_dwordx4 v[%d:%d], v213, s[56:59], s%d offen offset:%d%s' % (OB + 4 * k, OB + 4 * k + 3, 70 + i, 64 * j, opts.get('so', '')))
    stamp(A)
    stamp_end(A, 1)
    A(end + ':')
    A('s_endpgm')
```

```python
from asmlib import *
from g1 import *

RED = 131072
G2_LDS = RED + 32768

def gen_g2(A, opts):
    NH0, NH1, NH2 = [int(c) for c in opts.get('nh', '234')]
    GB = int(opts.get('gb', 3)); EP = int(opts.get('ep', 8))
    vm = VM()
    end = A.label('end2')
    load_kernargs(A)
    A('s_cmp_ge_u32 s2, 256')
    A('s_cbranch_scc1 ' + end)
    stamp_begin(A)
    A('s_and_b32 s3, s2, 7')
    A('s_lshl_b32 s3, s3, 2')
    A('s_lshr_b32 s4, s2, 6')
    A('s_add_u32 s3, s3, s4')
    A('s_bfe_u32 s4, s2, 0x30003')
    A('s_lshr_b32 s6, s3, 1')
    A('v_and_b32 v1, 63, v0')
    A('v_lshrrev_b32 v2, 6, v0')
    A('v_readfirstlane_b32 s5, v2')
    A('v_and_b32 v3, 0x1e3, v0')
    A('v_bfe_u32 v2, v0, 2, 2')
    A('v_lshl_or_b32 v3, v2, 3, v3')
    A('v_bfe_u32 v2, v0, 4, 1')
    A('v_lshl_or_b32 v3, v2, 2, v3')
    A('v_lshlrev_b32 v2, 1, v3')
    A('v_lshlrev_b32 v3, 4, v3')
    A('v_lshlrev_b32 v4, 4, v1')
    A('s_lshl_b32 s60, s3, 17')
    A('s_and_b32 s7, s5, 1')
    A('s_bfe_u32 s75, s5, 0x10001')
    A('s_lshr_b32 s61, s5, 2')
    A('s_lshl_b32 s62, s4, 1')
    A('s_add_u32 s62, s62, s7')
    A('s_lshl_b32 s63, s62, 16')
    A('s_lshl_b32 s64, s61, 13')
    A('s_add_u32 s63, s63, s64')
    A('s_lshl_b32 s64, s75, 14')
    A('s_add_u32 s63, s63, s64')
    if int(opts.get('ncp', 1)) == 8:
        A('s_and_b32 s64, s2, 7')
        A('s_lshl_b32 s64, s64, 20')
        A('s_add_u32 s63, s63, s64')
    A('s_add_u32 s63, s63, 0x%x' % WS_C)
    A('s_add_u32 s72, s63, 0x8000')
    A('s_waitcnt lgkmcnt(0)')
    srd(A, 52, P['ws'], WS_END)
    A('global_load_ushort v8, v2, s[%d:%d]' % (P['Lre'], P['Lre'] + 1))
    A('global_load_ushort v9, v2, s[%d:%d]' % (P['Lim'], P['Lim'] + 1))
    A('global_load_ushort v10, v2, s[%d:%d]' % (P['Aldt'], P['Aldt'] + 1))
    vm.issue('par', 3)
    EB = 12
    l = A.label('noE')
    for q in range(4):
        A('s_cmp_le_u32 s6, %d' % (4 * q))
        A('s_cbranch_scc1 ' + l)
        A('s_mov_b32 s64, 0x%x' % (WS_E + q * 8192))
        A('buffer_load_dwordx4 v[%d:%d], v3, s[52:55], s64 offen' % (EB + 4 * q, EB + 4 * q + 3))
    A(l + ':')
    vm.issue('E')
    HB = 64
    CB = 128
    XF, BF, GF, DS = 192, 200, 204, 212
    def ldH(o):
        A('s_add_u32 s64, s60, %d' % (o * 8192))
        A('s_add_u32 s65, s60, %d' % (o * 8192 + 65536))
        A('buffer_load_dwordx4 v[%d:%d], v3, s[52:55], s64 offen' % (HB + 8 * o, HB + 8 * o + 3))
        A('buffer_load_dwordx4 v[%d:%d], v3, s[52:55], s65 offen' % (HB + 8 * o + 4, HB + 8 * o + 7))
        vm.issue('H%d' % o, 2)
    def ldC(c):
        s_, j = c >> 1, c & 1
        sr = 72 if j else 63
        if s_ == 4: A('s_add_u32 s%d, s%d, 4096' % (sr, sr))
        A('buffer_load_dwordx4 v[%d:%d], v4, s[52:55], s%d offen offset:%d' % (CB + 4 * c, CB + 4 * c + 3, sr, (s_ % 4) * 1024))
        vm.issue('C%d' % c)
    def ldEpi():
        l1, l2 = A.label('eB'), A.label('eJ')
        A('s_cmp_lg_u32 s61, 0')
        A('s_cbranch_scc1 ' + l1)
        A('global_load_dwordx4 v[%d:%d], v220, s[%d:%d]' % (XF, XF + 3, P['x'], P['x'] + 1))
        A('global_load_dwordx4 v[%d:%d], v221, s[%d:%d]' % (XF + 4, XF + 7, P['x'], P['x'] + 1))
        A('global_load_short_d16_hi v%d, v224, s[%d:%d]' % (GF, P['ADs'], P['ADs'] + 1))
        A('global_load_short_d16_hi v%d, v224, s[%d:%d] offset:32' % (GF + 1, P['ADs'], P['ADs'] + 1))
        A('s_branch ' + l2)
        A(l1 + ':')
        A('s_add_u32 s68, s73, 0x10000')
        A('buffer_load_dwordx4 v[%d:%d], v222, s[52:55], s73 offen' % (XF, XF + 3))
        A('buffer_load_dwordx4 v[%d:%d], v222, s[52:55], s68 offen' % (XF + 4, XF + 7))
        A('buffer_load_dword v%d, v223, s[52:55], s74 offen' % GF)
        A('buffer_load_dword v%d, v223, s[52:55], s74 offen offset:64' % (GF + 1))
        A(l2 + ':')
        vm.issue('epi', 4)
    for o in range(NH0): ldH(o)
    A('v_and_b32 v5, 15, v1')
    A('v_lshrrev_b32 v6, 4, v1')
    A('s_lshl_b32 s66, s3, 6')
    A('s_lshl_b32 s67, s75, 5')
    A('s_add_u32 s66, s66, s67')
    A('s_lshl_b32 s67, s62, 5')
    A('s_lshl_b32 s68, s66, 10')
    A('s_lshl_b32 s69, s67, 1')
    A('s_add_u32 s68, s68, s69')
    A('v_lshlrev_b32 v7, 10, v5')
    A('v_lshl_add_u32 v7, v6, 4, v7')
    A('v_add_u32 v220, s68, v7')
    A('v_add_u32 v221, 0x4000, v220')
    A('s_lshl_b32 s68, s67, 12')
    A('s_lshl_b32 s69, s66, 1')
    A('s_add_u32 s68, s68, s69')
    A('s_add_u32 s73, s68, 0x%x' % WS_B)
    A('v_lshlrev_b32 v7, 12, v5')
    A('v_lshl_add_u32 v222, v6, 4, v7')
    A('s_lshl_b32 s68, s66, 2')
    A('s_add_u32 s74, s68, 0x%x' % WS_G)
    A('v_lshlrev_b32 v223, 2, v5')
    A('v_add_u32 v7, s67, v5')
    A('v_lshlrev_b32 v224, 1, v7')
    srd(A, 56, P['out'], 4194304)
    A('v_lshlrev_b32 v213, 11, v5')
    A('v_lshl_add_u32 v213, v6, 4, v213')
    A('s_lshl_b32 s70, s66, 11')
    A('s_lshl_b32 s71, s67, 2')
    A('s_add_u32 s70, s70, s71')
    A('v_and_b32 v7, 7, v0')
    A('v_and_b32 v28, 255, v0')
    A('v_lshlrev_b32 v28, 7, v28')
    A('v_lshl_or_b32 v28, v7, 4, v28')
    A('v_lshl_or_b32 v28, s61, 16, v28')
    A('v_lshrrev_b32 v7, 2, v1')
    A('v_and_b32 v11, 7, v7')
    A('v_bfe_u32 v29, v1, 1, 1')
    A('v_xor_b32 v11, v11, v29')
    A('v_lshlrev_b32 v7, 7, v7')
    A('v_lshl_or_b32 v7, v11, 4, v7')
    A('v_and_b32 v11, 1, v1')
    A('v_lshl_or_b32 v7, v11, 3, v7')
    A('s_lshl_b32 s64, s61, 16')
    A('s_mul_i32 s65, s75, 0x8040')
    A('s_add_u32 s64, s64, s65')
    A('v_xor_b32 v7, s64, v7')
    A('s_and_b32 s64, s5, 3')
    A('s_lshl_b32 s64, s64, 13')
    A('s_add_u32 s64, s64, 0x%x' % RED)
    A('v_add_u32 v218, s64, v4')
    for t in range(4):
        A('v_xor_b32 v%d, %d, v7' % (214 + t, 32 * t))
    stamp(A)
    vm.wait(A, 'E')
    A('v_lshlrev_b32 v8, 16, v8')
    A('v_lshlrev_b32 v9, 16, v9')
    A('v_lshlrev_b32 v10, 16, v10')
    A('v_mul_f32 v10, %s, v10' % f2u(LOG2E))
    A('v_exp_f32 v10, v10')
    A('v_cvt_pk_bf16_f32 v10, v10, v10')
    A('v_lshlrev_b32 v10, 16, v10')
    A('v_mul_f32 v8, v10, v8')
    A('v_mul_f32 v9, v10, v9')
    A('v_mul_f32 v8, %s, v8' % f2u(LOG2E))
    A('v_mul_f32 v9, %s, v9' % f2u(-INV2PI))
    PR, PI = 32, 40
    LO, HI = 'op_sel_hi:[1,0%s]', 'op_sel:[0,1%s]'
    def pk(op, d, a_, b_, c_, sel, swap=False, neg=''):
        t = ',0' if c_ is not None else ''; u = ',1' if c_ is not None else ''
        m = ' op_sel:[%d,%d%s] op_sel_hi:[%d,%d%s]' % (1 if swap else 0, sel, t, 0 if swap else 1, sel, u)
        if 'l' in neg: m += ' neg_lo:[1,0%s]' % t
        if 'h' in neg: m += ' neg_hi:[1,0%s]' % t
        A('v_pk_%s_f32 v[%d:%d], v[%d:%d], v[%d:%d]%s%s' % (op, d, d + 1, a_, a_ + 1, b_, b_ + 1, '' if c_ is None else ', v[%d:%d]' % (c_, c_ + 1), m))
    cexp(A, 48, 49, 8, 9, 128.0, 2, 7)
    cexp(A, PR, PI, 8, 9, 1.0, 2, 7)
    for o in range(NH0, NH1): ldH(o)
    A('v_mov_b32 v50, 0')
    A('v_mov_b32 v51, 0')
    A('v_mul_f32 v%d, v%d, v%d' % (PR + 1, PR, PR))
    A('v_mul_f32 v%d, v%d, v%d' % (PI + 1, PR, PI))
    A('v_fma_f32 v%d, -v%d, v%d, v%d' % (PR + 1, PI, PI, PR + 1))
    A('v_add_f32 v%d, v%d, v%d' % (PI + 1, PI + 1, PI + 1))
    def pw2(d, x, m):
        pk('mul', PR + d, PR + x, PR + m, None, 1)
        pk('mul', PI + d, PR + x, PI + m, None, 1)
        pk('fma', PR + d, PI + x, PI + m, PR + d, 1, neg='lh')
        pk('fma', PI + d, PI + x, PR + m, PI + d, 1)
    pw2(2, 0, 0); pw2(4, 0, 2); pw2(6, 2, 2)
    l = A.label('Sdone')
    for c in range(15):
        A('s_cmp_le_u32 s6, %d' % c)
        A('s_cbranch_scc1 ' + l)
        T = 54 + 2 * (c & 1)
        A('v_lshlrev_b32 v%d, 16, v%d' % (T, EB + c))
        A('v_and_b32 v%d, 0xffff0000, v%d' % (T + 1, EB + c))
        pk('fma', T, 50, 48, T, 0)
        pk('fma', 50, 50, 48, T, 1, swap=True, neg='l')
    A(l + ':')
    for o in range(NH1, NH2): ldH(o)
    l = A.label('even')
    A('s_bitcmp0_b32 s3, 0')
    A('s_cbranch_scc1 ' + l)
    cexp(A, 48, 49, 8, 9, 64.0, 2, 7)
    pk('mul', 52, 50, 48, None, 0)
    pk('fma', 50, 50, 48, 52, 1, swap=True, neg='l')
    A(l + ':')
    stamp(A)
    def gbar(grp):
        l = A.label('gb')
        A('s_cmp_lg_u32 s61, %d' % grp)
        A('s_cbranch_scc1 ' + l)
        A('s_barrier')
        A(l + ':')
    z = 50
    FX = int(opts.get('fx', 2))
    rest = []
    for o in range(NH2, 8): rest += [lambda o=o: ldH(o), lambda: None]
    rest += [lambda s_=s_: ldC(s_) for s_ in range(EP)] + [ldEpi] + [lambda s_=s_: ldC(s_) for s_ in range(EP, 16)]
    for o in range(8):
        if o == GB: gbar(1)
        vm.wait(A, 'H%d' % o)
        for _ in range(2 if o < 6 else 3):
            if rest: rest.pop(0)()
        hr, hi = HB + 8 * o, HB + 8 * o + 4
        zn = 102 - z
        for q in range(4):
            T = 54 + 4 * (q & 1)
            A('v_lshlrev_b32 v%d, 16, v%d' % (T, hr + q))
            A('v_and_b32 v%d, 0xffff0000, v%d' % (T + 1, hr + q))
            A('v_lshlrev_b32 v%d, 16, v%d' % (T + 2, hi + q))
            A('v_and_b32 v%d, 0xffff0000, v%d' % (T + 3, hi + q))
            if q == 2: A('v_xor_b32 v2, %d, v28' % (16 * o))
            a_, b_ = PR + 2 * q, PI + 2 * q
            def zupd():
                if o < 7 and q == 0:
                    A('v_mul_f32 v%d, v%d, v%d' % (zn, z, PR + 7)); A('v_mul_f32 v%d, v%d, v%d' % (zn + 1, z + 1, PR + 7))
                if o < 7 and q == 1:
                    A('v_fma_f32 v%d, -v%d, v%d, v%d' % (zn, z + 1, PI + 7, zn)); A('v_fma_f32 v%d, v%d, v%d, v%d' % (zn + 1, z, PI + 7, zn + 1))
            if FX == 1:
                D = 240 + 4 * (o & 1)
                if q == 0:
                    for r in range(4): A('v_mov_b32 v%d, v%d' % (D + r, z + (r >> 1)))
                f = lambda d, x, y, n='': A('v_pk_fma_f32 v[%d:%d], v[%d:%d], v[%d:%d], v[%d:%d]%s' % (d, d + 1, x, x + 1, y, y + 1, d, d + 1, n))
                f(T, a_, D); f(T + 2, a_, D + 2); zupd()
                f(T, b_, D + 2, ' neg_lo:[1,0,0] neg_hi:[1,0,0]'); f(T + 2, b_, D)
            else:
                for e in range(2):
                    A('v_fmac_f32 v%d, v%d, v%d' % (T + e, a_ + e, z)); A('v_fmac_f32 v%d, v%d, v%d' % (T + 2 + e, a_ + e, z + 1))
                zupd()
                for e in range(2):
                    A('v_fma_f32 v%d, -v%d, v%d, v%d' % (T + e, b_ + e, z + 1, T + e)); A('v_fmac_f32 v%d, v%d, v%d' % (T + 2 + e, b_ + e, z))
            A('v_cvt_pk_bf16_f32 v%d, v%d, v%d' % (hr + q, T, T + 1))
            A('v_cvt_pk_bf16_f32 v%d, v%d, v%d' % (hi + q, T + 2, T + 3))
        A('ds_write_b128 v2, v[%d:%d]' % (hr, hr + 3))
        A('ds_write_b128 v2, v[%d:%d] offset:32768' % (hi, hi + 3))
        z = zn
    stamp(A)
    for _ in range(3): rest.pop(0)()
    AC = 32
    FR = 64
    SEL, OB = 96, 104
    lB, lJ = A.label('mB'), A.label('mJ')
    A('s_cmp_lg_u32 s61, 0')
    A('s_cbranch_scc1 ' + lB)
    for r in range(32): A('v_mov_b32 v%d, 0' % (AC + r))
    A('s_waitcnt lgkmcnt(0)')
    A('s_barrier')
    A('s_branch ' + lJ)
    A(lB + ':')
    A('s_waitcnt lgkmcnt(0)')
    A('s_barrier')
    for k in range(8): A('ds_read_b128 v[%d:%d], v218 offset:%d' % (AC + 4 * k, AC + 4 * k + 3, 1024 * k))
    A(lJ + ':')
    stamp(A)
    def rd(s_, u):
        f = FR + (s_ & 1) * 16
        A('ds_read_b64_tr_b16 v[%d:%d], v%d offset:%d' % (f + 4 * u, f + 4 * u + 1, 214 + u, s_ * 4096))
        A('ds_read_b64_tr_b16 v[%d:%d], v%d offset:%d' % (f + 4 * u + 2, f + 4 * u + 3, 214 + u, s_ * 4096 + 2048))
    sh = ['v_lshrrev_b32 v2, 1, v5', 'v_lshlrev_b32 v7, 2, v6', 'v_sub_u32 v2, v2, v7', 'v_and_b32 v11, 1, v5', 'v_cmp_eq_u32 vcc, 0, v11']
    for i in range(2):
        sh += ['v_lshrrev_b32 v11, 16, v%d' % (GF + i), 'v_and_b32 v12, 0xffff0000, v%d' % (GF + i),
               'v_cndmask_b32 v%d, v12, v11, vcc' % (13 + i), 'v_lshlrev_b32 v%d, 16, v%d' % (GF + i, GF + i)]
    for i in range(2):
        for r in range(4):
            sh += ['v_cmp_eq_u32 vcc, %d, v2' % (r - 8 * i), None, 'v_cndmask_b32 v%d, 0, v%d, vcc' % (SEL + 4 * i + r, 13 + i)]
    for u in (2, 3): rd(0, u)
    A('s_waitcnt lgkmcnt(8)')
    for u in (0, 1): rd(0, u)
    for s_ in range(8):
        f = FR + (s_ & 1) * 16
        for _ in range(2):
            if rest: rest.pop(0)()
        vm.wait(A, 'C%d' % (2 * s_ + 1))
        if s_ == 3: vm.wait(A, 'epi')
        for n_, u in enumerate((2, 3, 0, 1)):
            if s_ < 7:
                rd(s_ + 1, u)
                A('s_waitcnt lgkmcnt(8)')
            else:
                A('s_waitcnt lgkmcnt(%d)' % (6 - 2 * n_))
            for j in range(2):
                d = AC + 16 * j + 4 * u
                A('v_mfma_f32_16x16x32_bf16 v[%d:%d], v[%d:%d], v[%d:%d], v[%d:%d]' % (
                    d, d + 3, CB + 8 * s_ + 4 * j, CB + 8 * s_ + 4 * j + 3, f + 4 * u, f + 4 * u + 3, d, d + 3))
                if s_ >= 3:
                    for _ in range(1 + j):
                        if sh:
                            t = sh.pop(0)
                            if t is None: break
                            A(t)
    assert not rest and not sh
    stamp(A)
    lB = A.label('fB')
    A('s_cmp_lg_u32 s61, 0')
    A('s_cbranch_scc1 ' + lB)
    for j in range(2):
        for i in range(2):
            d = AC + 16 * j + 4 * i
            A('v_mfma_f32_16x16x32_bf16 v[%d:%d], v[%d:%d], v[%d:%d], v[%d:%d]' % (d, d + 3, SEL + 4 * j, SEL + 4 * j + 3, XF + 4 * i, XF + 4 * i + 3, d, d + 3))
    for k in (2, 3, 6, 7, 0, 1, 4, 5): A('ds_write_b128 v218, v[%d:%d] offset:%d' % (AC + 4 * k, AC + 4 * k + 3, 1024 * k))
    A('s_waitcnt lgkmcnt(0)')
    A('s_barrier')
    if STAMP['on']:
        n0 = STAMP['n']; stamp(A); stamp_end(A, 1); STAMP['n'] = n0
    A('s_endpgm')
    A(lB + ':')
    for j in range(2):
        for i in range(2):
            d = OB + 8 * j + 4 * i
            A('v_mfma_f32_16x16x32_bf16 v[%d:%d], v[%d:%d], v[%d:%d], 0' % (d, d + 3, XF + 4 * j, XF + 4 * j + 3, SEL + 4 * i, SEL + 4 * i + 3))
            k = 4 * j + 2 + i
            A('ds_write_b128 v218, v[%d:%d] offset:%d' % (AC + 4 * k, AC + 4 * k + 3, 1024 * (2 * j + i)))
    A('v_xor_b32 v7, 0x4000, v218')
    A('s_add_u32 s71, s70, 0x8000')
    A('s_waitcnt lgkmcnt(0)')
    A('s_barrier')
    for k in range(4): A('ds_read_b128 v[%d:%d], v7 offset:%d' % (64 + 4 * k, 67 + 4 * k, 1024 * k))
    for j in range(2):
        for i in range(2):
            k = 2 * j + i
            A('s_waitcnt lgkmcnt(%d)' % (3 - k))
            for r in range(4): A('v_add_f32 v%d, v%d, v%d' % (64 + 4 * k + r, 64 + 4 * k + r, AC + 16 * j + 4 * i + r))
            for r in range(4): A('v_fmac_f32 v%d, v%d, v%d' % (OB + 4 * k + r, GF + i, 64 + 4 * k + r))
            A('buffer_store_dwordx4 v[%d:%d], v213, s[56:59], s%d offen offset:%d%s' % (OB + 4 * k, OB + 4 * k + 3, 70 + i, 64 * j, opts.get('so', '')))
    stamp(A)
    stamp_end(A, 1)
    A(end + ':')
    A('s_endpgm')
```

```python
import sys
from asmlib import *
from g1 import *
from g2 import *
try:
    from cv import *
except ImportError:
    gen_cv = None

ref = open('gated_mix__ssm_conv_s5__ssm_conv_s4__prompt.s.ref').read().split('\n')
hdr = [l for l in ref if l.startswith(';') and '@launch' not in l and 'Override' not in l and 'grid=ceil' not in l]

def kernel(name, body, vgpr):
    lines, n = fix_hazards(body)
    sys.stderr.write('%s: %d lines, %d nops inserted\n' % (name, len(lines), n))
    t = ['.globl ' + name, '.p2align 8', '.type %s,@function' % name, name + ':'] + lines
    acc = (vgpr + 3) // 4 * 4
    d = ['.p2align 6', '.amdhsa_kernel ' + name, '  .amdhsa_next_free_vgpr %d' % vgpr, '  .amdhsa_next_free_sgpr 102',
         '  .amdhsa_accum_offset %d' % min(acc, 256), '  .amdhsa_group_segment_fixed_size 0', '  .amdhsa_kernarg_size 176',
         '  .amdhsa_user_sgpr_count 2', '  .amdhsa_user_sgpr_kernarg_segment_ptr 1',
         '  .amdhsa_system_sgpr_workgroup_id_x 1', '.end_amdhsa_kernel']
    return t, d

def build(opts):
    A = Asm()
    load_kernargs(A)
    A('s_cmp_ge_u32 s2, 256')
    A('s_cbranch_scc1 L_end1')
    STAMP['on'] = bool(opts.get('stamp'))
    stamp_begin(A)
    A('s_and_b32 s3, s2, 7')
    A('s_lshr_b32 s4, s2, 3')
    A('s_cmp_ge_u32 s4, 16')
    A('s_cbranch_scc1 L_conv')
    A('s_lshl_b32 s3, s3, 1')
    A('s_lshr_b32 s5, s4, 3')
    A('s_add_u32 s3, s3, s5')
    A('s_and_b32 s4, s4, 7')
    gen_g1(A, opts)
    A('L_conv:')
    lds1 = G1_LDS
    if gen_cv is not None:
        gen_cv(A, opts)
        lds1 = max(lds1, CV_LDS)
    A('L_end1:')
    A('s_endpgm')
    ic = [i for i, l in enumerate(A.l) if l.strip().startswith('L_conv:')][0]
    im = max(i for i in range(ic) if A.l[i].strip().startswith('v_mfma'))
    ip = min(i for i in range(im, ic) if A.l[i].strip().startswith('v_pk_') and 'op_sel:' in A.l[i])
    assert not any(A.l[i].strip().startswith(('s_cbranch', 's_branch')) or A.l[i].strip().endswith(':') for i in range(im, ip))
    sys.stderr.write('gap %d\n' % (ip - im))
    A.l[ip:ip] = ['s_nop 15', 's_nop 7', 's_barrier']
    t1, d1 = kernel('mix_a_kernel', A.l, 256)
    B = Asm(); B.uid = 1000
    gen_g2(B, opts)
    t2, d2 = kernel('mix_b_kernel', B.l, 256)
    out = hdr + ['; @launch kernel=mix_a_kernel grid=(256,1,1) block=(512,1,1) lds=%d' % lds1,
                 '; @launch kernel=mix_b_kernel grid=(256,1,1) block=(512,1,1) lds=%d' % G2_LDS,
                 '.amdgcn_target "amdgcn-amd-amdhsa--gfx950"', '.text'] + t1 + t2 + ['.section .rodata,"a"'] + d1 + d2
    return '\n'.join(out) + '\n'

if __name__ == '__main__':
    path = sys.argv[1]
    opts = dict(kv.split('=', 1) for kv in sys.argv[2:])
    for kk in ('st', 'so', 'xl', 'cs'):
        if kk in opts: opts[kk] = ' ' + opts[kk].replace('+', ' ')
    open(path, 'w').write(build(opts))
```
